```python
import torch

def _softmax(x, axis=-1):
    return torch.softmax(x, dim=axis)
def _gelu(x):
    return torch.nn.functional.gelu(x, approximate="tanh")
def _silu(x):
    return torch.nn.functional.silu(x)
def _sigmoid(x):
    return torch.sigmoid(x)
def _layernorm(x, axis=-1, eps=1e-5):
    m = x.mean(dim=axis, keepdim=True)
    v = x.var(dim=axis, keepdim=True, unbiased=False)
    return (x - m) / torch.sqrt(v + eps)
def _scatter_add(tgt, idx, src, axis=0):
    return tgt.clone().index_add_(axis, idx, src)
def _segment_sum(src, seg, n):
    out = torch.zeros((n,) + src.shape[1:], dtype=src.dtype)
    return out.index_add_(0, seg, src)
def _pad(x, pw):
    flat = tuple(v for pair in reversed(pw) for v in pair)
    return torch.nn.functional.pad(x, flat)

kernel_name = 'standalone__cross_network_dcn__recsys'

def setup_inputs():

    _w = (lambda a: (lambda t: t.to(torch.bfloat16) if t.is_floating_point() else t)(torch.as_tensor(a)))
    B, F, D, L = 16384, 26, 32, 3
    Din = min(F * D, 1024)
    return {
        "x0": _w((lambda *s: torch.randn(*s, dtype=torch.bfloat16) * 0.05)(B, Din)),
        "ws": _w((lambda *s: torch.randn(*s, dtype=torch.bfloat16) * 0.4)(L, Din, Din) * (Din ** -0.5)),
        "bs": _w((lambda *s: torch.randn(*s, dtype=torch.bfloat16) * 3.2)(L, Din) * 0.01),
    }

def reference(x0, ws, bs):
    x = x0
    L = ws.shape[0]
    for l in range(L):
        proj = torch.einsum('bd,de->be', x, ws[l]) + bs[l]
        x = x0 * proj + x
    return x
```

```python
A0 = 256


def V(n):
    return n


def A(n):
    return A0 + n


def rname(r):
    return ("v%d" % r) if r < A0 else ("a%d" % (r - A0))


def rrange(r, cnt):
    if cnt == 1:
        return rname(r)
    p = "v" if r < A0 else "a"
    b = r if r < A0 else r - A0
    assert (r < A0) == ((r + cnt - 1) < A0)
    return "%s[%d:%d]" % (p, b, b + cnt - 1)


class I:
    __slots__ = ("text", "kind", "reads", "writes", "srcc", "nst", "comment", "extra")

    def __init__(self, text, kind, reads=(), writes=(), srcc=(), nst=1):
        self.text = text
        self.kind = kind
        self.reads = frozenset(reads)
        self.writes = frozenset(writes)
        self.srcc = frozenset(srcc)
        self.nst = nst
        self.comment = None
        self.extra = frozenset()

    def __repr__(self):
        return "I(%s)" % self.text


def regs(base, cnt):
    return list(range(base, base + cnt))


def mfma16(d, a, b, c):
    if c is None:
        cs = "0"
        cr = []
    else:
        cs = rrange(c, 4)
        cr = regs(c, 4)
    t = "v_mfma_f32_16x16x32_bf16 %s, %s, %s, %s" % (rrange(d, 4), rrange(a, 4), rrange(b, 4), cs)
    return I(t, "mfma", reads=regs(a, 4) + regs(b, 4) + cr, writes=regs(d, 4), srcc=cr)


def _opnd(x):
    if isinstance(x, str):
        return x, []
    return rname(x), [x]


def valu(op, d, *srcs):
    ts = []
    rd = []
    for s in srcs:
        t, r = _opnd(s)
        ts.append(t)
        rd += r
    return I("%s %s, %s" % (op, rname(d), ", ".join(ts)), "valu", reads=rd, writes=[d])


def valu_pk(op, d, *srcs):
    ts = []
    rd = []
    for s in srcs:
        ts.append(rrange(s, 2))
        rd += regs(s, 2)
    return I("%s %s, %s" % (op, rrange(d, 2), ", ".join(ts)), "valu", reads=rd, writes=regs(d, 2))


def buf_load(d, cnt, vaddr, srd, soff, imm=0):
    op = {1: "buffer_load_dword", 2: "buffer_load_dwordx2", 4: "buffer_load_dwordx4"}[cnt]
    t = "%s %s, %s, %s, %s offen" % (op, rrange(d, cnt), rname(vaddr), srd, soff)
    if imm:
        assert 0 <= imm < 4096
        t += " offset:%d" % imm
    return I(t, "vload", reads=[vaddr], writes=regs(d, cnt))


def buf_load_ushort(d, vaddr, srd, soff, imm=0):
    t = "buffer_load_ushort %s, %s, %s, %s offen" % (rname(d), rname(vaddr), srd, soff)
    if imm:
        t += " offset:%d" % imm
    return I(t, "vload", reads=[vaddr], writes=[d])


def buf_store(s, cnt, vaddr, srd, soff, imm=0):
    op = {1: "buffer_store_dword", 2: "buffer_store_dwordx2", 4: "buffer_store_dwordx4"}[cnt]
    t = "%s %s, %s, %s, %s offen" % (op, rrange(s, cnt), rname(vaddr), srd, soff)
    if imm:
        assert 0 <= imm < 4096
        t += " offset:%d" % imm
    return I(t, "vstore", reads=[vaddr] + regs(s, cnt))


def ds_read(d, cnt, vaddr, imm=0):
    op = {1: "ds_read_b32", 2: "ds_read_b64", 4: "ds_read_b128"}[cnt]
    t = "%s %s, %s" % (op, rrange(d, cnt), rname(vaddr))
    if imm:
        assert 0 <= imm < 65536, imm
        t += " offset:%d" % imm
    return I(t, "dsread", reads=[vaddr], writes=regs(d, cnt))


def ds_write(vaddr, s, cnt, imm=0):
    op = {1: "ds_write_b32", 2: "ds_write_b64", 4: "ds_write_b128"}[cnt]
    t = "%s %s, %s" % (op, rname(vaddr), rrange(s, cnt))
    if imm:
        assert 0 <= imm < 65536, imm
        t += " offset:%d" % imm
    return I(t, "dswrite", reads=[vaddr] + regs(s, cnt))


def salu(text):
    return I(text, "salu")


def raw(text, kind="raw", reads=(), writes=()):
    return I(text, kind, reads=reads, writes=writes)


def barrier():
    return I("s_barrier", "barrier")


def stamp(k, real=False):
    op = "s_memrealtime" if real else "s_memtime"
    return I("%s s[%d:%d]" % (op, 64 + 2 * k, 65 + 2 * k), "stamp")


def drain_vm():
    return I("", "drainvm")


def insert_waits(stream):
    out = []
    pvm = []
    plg = []
    for ins in stream:
        if ins.kind == "barrier":
            if plg:
                out.append(I("s_waitcnt lgkmcnt(0)", "wait"))
                plg = []
            out.append(ins)
            continue
        if ins.kind == "stamp":
            out.append(I(ins.text, "raw"))
            out.append(I("s_waitcnt lgkmcnt(0)", "wait"))
            plg = []
            continue
        if ins.kind == "drainvm":
            if pvm:
                out.append(I("s_waitcnt vmcnt(0)", "wait"))
                pvm = []
            continue
        touched = ins.reads | ins.writes | ins.extra
        nvm = None
        nlg = None
        if touched:
            for idx in range(len(pvm) - 1, -1, -1):
                if pvm[idx] & touched:
                    nvm = len(pvm) - 1 - idx
                    break
            for idx in range(len(plg) - 1, -1, -1):
                if plg[idx] & touched:
                    nlg = len(plg) - 1 - idx
                    break
        if nvm is not None or nlg is not None:
            parts = []
            if nvm is not None:
                assert nvm <= 63
                parts.append("vmcnt(%d)" % nvm)
                pvm = pvm[len(pvm) - nvm:] if nvm else []
            if nlg is not None:
                n = min(nlg, 15)
                parts.append("lgkmcnt(%d)" % n)
                plg = plg[len(plg) - n:] if n else []
            out.append(I("s_waitcnt " + " ".join(parts), "wait"))
        out.append(ins)
        if ins.kind == "vload":
            pvm.append(set(ins.writes))
        elif ins.kind == "vstore":
            pvm.append(set())
        elif ins.kind == "dsread":
            plg.append(set(ins.writes))
        elif ins.kind == "dswrite":
            plg.append(set())
        if len(pvm) > 63:
            raise RuntimeError("vmcnt overflow (more than 63 outstanding)")
    return out


MFMA_D_TO_VALU = 8
MFMA_D_TO_AB = 8
MFMA_D_TO_C_OVERLAP = 6
VALU_TO_MFMA = 2
MFMA_C_TO_VALU_W = 3
STORE_WAR = 2


def pad_hazards(stream, verbose=False):
    out = []
    pos = 0
    last_mfma_w = {}
    last_mfma_wD = {}
    last_valu_w = {}
    last_mfma_c = {}
    last_store_r = {}
    nnops = 0

    def need(p, n):
        return n - (pos - p - 1)

    for ins in stream:
        k = ins.kind
        req = 0
        if k == "mfma":
            for r in ins.reads:
                if r in last_valu_w:
                    req = max(req, need(last_valu_w[r], VALU_TO_MFMA))
                if r in last_mfma_w:
                    if r in ins.srcc:
                        if last_mfma_wD[r] != ins.srcc:
                            req = max(req, need(last_mfma_w[r], MFMA_D_TO_C_OVERLAP))
                    ab = ins.reads - ins.srcc
                    if r in ab:
                        req = max(req, need(last_mfma_w[r], MFMA_D_TO_AB))
            for r in ins.writes:
                if r in last_mfma_w and r not in ins.srcc:
                    req = max(req, need(last_mfma_w[r], MFMA_D_TO_C_OVERLAP))
        elif k in ("valu", "vload", "vstore", "dsread", "dswrite"):
            for r in (ins.reads | ins.writes):
                if r in last_mfma_w:
                    req = max(req, need(last_mfma_w[r], MFMA_D_TO_VALU))
            if k == "valu":
                for r in ins.writes:
                    if r in last_mfma_c:
                        req = max(req, need(last_mfma_c[r], MFMA_C_TO_VALU_W))
                    if r in last_store_r:
                        req = max(req, need(last_store_r[r], STORE_WAR))
        if req > 0:
            nnops += 1
            rem = req
            while rem > 0:
                n = min(rem, 16)
                out.append(I("s_nop %d" % (n - 1), "raw", nst=n))
                pos += n
                rem -= n
        out.append(ins)
        me = pos
        if ins.text:
            pos += ins.nst
        if k == "mfma":
            for r in ins.writes:
                last_mfma_w[r] = me
                last_mfma_wD[r] = ins.writes
                last_valu_w.pop(r, None)
            for r in ins.srcc:
                last_mfma_c[r] = me
        elif k == "valu":
            for r in ins.writes:
                last_valu_w[r] = me
                last_mfma_w.pop(r, None)
        elif k in ("vload", "dsread"):
            for r in ins.writes:
                last_valu_w.pop(r, None)
                last_mfma_w.pop(r, None)
        if k == "vstore":
            for r in ins.reads:
                last_store_r[r] = me
    if verbose:
        print("hazard nops inserted:", nnops)
    return out


def render(stream):
    return "\n".join("  " + i.text for i in stream if i.text)
```

```python
import sys, os
from collections import deque
from fw import *

X_STAMP = int(os.environ.get("X_STAMP", "0"))
X_DEEP0 = int(os.environ.get("X_DEEP0", "1"))
X_GROW2 = int(os.environ.get("X_GROW2", "1"))
X_XPOL = os.environ.get("X_XPOL", "")
X_SPOL = os.environ.get("X_SPOL", "")
XSTEP = int(os.environ.get("XSTEP", "8"))
XLEAD = int(os.environ.get("XLEAD", "48"))

NB, D, L = 16384, 832, 3
ROWS = 64
NWG = NB // ROWS
ROWB = D * 2
NP = 26
NT = 13
TILES_PER_LAYER = NP * NT
TILES_PER_WAVE = L * TILES_PER_LAYER
WP_BYTES = 4 * TILES_PER_WAVE * 1024
XT_BYTES = 7 * 16384
BIAS_BASE = XT_BYTES
LDS_BYTES = XT_BYTES + 10240
KMAIN = "standalone__cross_network_dcn__recsys_kernel"
KPREP = "dcn_prep_kernel"


def kb_of_p(p):
    if p < 16:
        return 6 * (p // 4) + (p % 4)
    p2 = p - 16
    if p2 < 8:
        return 6 * (p2 // 2) + 4 + (p2 % 2)
    return 24 + (p2 - 8)


def feat(w, c, i):
    if c < 12:
        return 192 * w + 32 * (c // 2) + 8 * (i // 4) + 4 * (c % 2) + (i % 4)
    return 768 + 16 * w + i


PASSES = [list(range(8)), list(range(8, 13))]


def stream_index(p, c):
    base = 0
    for tl in PASSES:
        if c in tl:
            return base + p * len(tl) + tl.index(c)
        base += NP * len(tl)
    raise ValueError


def gen_prep():
    return f"""
.globl {KPREP}
.p2align 8
.type {KPREP},@function
{KPREP}:
  s_cmp_ge_u32 s2, {NP}
  s_cbranch_scc1 Lprep_end
  s_load_dwordx2 s[4:5], s[0:1], 8
  s_load_dwordx2 s[6:7], s[0:1], 40      ; d_ws
  v_lshrrev_b32 v1, 6, v0
  v_and_b32 v2, 63, v0                   ; lane
  v_and_b32 v3, 15, v2                   ; i
  v_lshrrev_b32 v4, 4, v2                ; g
  s_nop 0
  v_readfirstlane_b32 s9, v1             ; c
  s_lshr_b32 s10, s3, 2                  ; l
  s_and_b32 s11, s3, 3                   ; w
  ; kb(p)
  s_lshr_b32 s12, s2, 2
  s_mul_i32 s12, s12, 6
  s_and_b32 s13, s2, 3
  s_add_u32 s12, s12, s13                ; p<16
  s_sub_u32 s13, s2, 16                  ; p2
  s_lshr_b32 s14, s13, 1
  s_mul_i32 s14, s14, 6
  s_and_b32 s15, s13, 1
  s_add_u32 s14, s14, s15
  s_add_u32 s14, s14, 4                  ; 16<=p<24
  s_cmp_lt_u32 s2, 16
  s_cselect_b32 s12, s12, s14
  s_cmp_lt_u32 s2, 24
  s_cselect_b32 s12, s12, s2             ; p>=24 : kb = p
  ; featbase = c<12 ? 192w + 32(c>>1) + 4(c&1) : 768 + 16w
  s_mul_i32 s13, s11, 192
  s_lshr_b32 s14, s9, 1
  s_lshl_b32 s14, s14, 5
  s_add_u32 s13, s13, s14
  s_and_b32 s14, s9, 1
  s_lshl_b32 s14, s14, 2
  s_add_u32 s13, s13, s14
  s_lshl_b32 s14, s11, 4
  s_add_u32 s14, s14, 768
  s_cmp_lt_u32 s9, 12
  s_cselect_b32 s13, s13, s14            ; featbase
  v_lshrrev_b32 v5, 2, v3
  v_lshlrev_b32 v5, 3, v5
  v_and_b32 v6, 3, v3
  v_add_u32 v5, v5, v6                   ; 8*(i>>2) + (i&3)
  v_cmp_gt_u32 vcc, 12, v1
  s_nop 1
  v_cndmask_b32 v5, v3, v5, vcc          ; c<12 ? .. : i
  v_lshlrev_b32 v5, 1, v5                ; *2 bytes
  v_mul_u32_u24 v6, 13312, v4            ; 8*g*1664
  v_add_u32 v5, v5, v6                   ; voffset
  v_lshlrev_b32 v7, 4, v2                ; lane*16
  s_waitcnt lgkmcnt(0)
  s_mov_b32 s24, s4
  s_and_b32 s25, s5, 0xffff
  s_mov_b32 s26, {L * D * ROWB}
  s_mov_b32 s27, 0x00020000
  s_mov_b32 s28, s6
  s_and_b32 s29, s7, 0xffff
  s_mov_b32 s30, {WP_BYTES}
  s_mov_b32 s31, 0x00020000
  s_mul_i32 s14, s10, {D * ROWB}
  s_mul_i32 s15, s12, {32 * ROWB}
  s_add_u32 s14, s14, s15
  s_lshl_b32 s15, s13, 1
  s_add_u32 s32, s14, s15
  s_add_u32 s33, s32, {ROWB}
  s_add_u32 s34, s33, {ROWB}
  s_add_u32 s35, s34, {ROWB}
  s_add_u32 s36, s35, {ROWB}
  s_add_u32 s37, s36, {ROWB}
  s_add_u32 s38, s37, {ROWB}
  s_add_u32 s39, s38, {ROWB}
  buffer_load_ushort v10, v5, s[24:27], s32 offen
  buffer_load_ushort v11, v5, s[24:27], s33 offen
  buffer_load_ushort v12, v5, s[24:27], s34 offen
  buffer_load_ushort v13, v5, s[24:27], s35 offen
  buffer_load_ushort v14, v5, s[24:27], s36 offen
  buffer_load_ushort v15, v5, s[24:27], s37 offen
  buffer_load_ushort v16, v5, s[24:27], s38 offen
  buffer_load_ushort v17, v5, s[24:27], s39 offen
  s_lshl_b32 s20, s2, 3
  s_add_u32 s20, s20, s9
  s_mul_i32 s21, s2, 5
  s_add_u32 s21, s21, s9
  s_add_u32 s21, s21, 200
  s_cmp_lt_u32 s9, 8
  s_cselect_b32 s20, s20, s21
  s_mul_i32 s21, s11, {TILES_PER_WAVE}
  s_add_u32 s20, s20, s21
  s_mul_i32 s21, s10, {TILES_PER_LAYER}
  s_add_u32 s20, s20, s21
  s_lshl_b32 s20, s20, 10
  s_waitcnt vmcnt(0)
  v_lshl_or_b32 v20, v11, 16, v10
  v_lshl_or_b32 v21, v13, 16, v12
  v_lshl_or_b32 v22, v15, 16, v14
  v_lshl_or_b32 v23, v17, 16, v16
  buffer_store_dwordx4 v[20:23], v7, s[28:31], s20 offen
Lprep_end:
  s_endpgm
"""


DESC = """
.amdhsa_kernel {name}
  .amdhsa_next_free_vgpr {nvgpr}
  .amdhsa_next_free_sgpr {nsgpr}
  .amdhsa_accum_offset {accoff}
  .amdhsa_group_segment_fixed_size 0
  .amdhsa_kernarg_size 48
  .amdhsa_user_sgpr_count 2
  .amdhsa_user_sgpr_kernarg_segment_ptr 1
  .amdhsa_system_sgpr_workgroup_id_x 1
{extra}.end_amdhsa_kernel
"""

ACC = 0


def acc(c, rf):
    return ACC + (c * 4 + rf) * 4


def bias_reg(c):
    if c < 8:
        c1 = c | 1
        return acc(c1, 1) if (c & 1) == 0 else acc(c1, 0)
    return acc(c, 0)


VM = 208
vW16 = VM + 0
vXA = VM + 1
vEA = VM + 9
vEB = VM + 13
vES = VM + 15
vOG = VM + 16
vOS = VM + 17
vBA = VM + 18
vBS = VM + 19
vT = VM + 20
RING = 0
R = 26
XF = 104
X0C = 136

sX0 = "s[4:7]"
sWP = "s[8:11]"
sOUT = "s[12:15]"
sBS = "s[16:19]"
sWOFF = "s20"
sWAVE = "s21"
sRF = ["0", "s24", "s25", "s26"]
sMASK = "s27"


def x0reg(P, rf, d):
    if P < 6:
        return A(X0C + (P * 4 + rf) * 4 + d)
    return A(X0C + 96 + rf * 2 + d)


class Call:
    def __init__(self, fn):
        self.fn = fn


class Gen:
    def __init__(self):
        self.s = []
        self.nload = 0
        self.free = deque(A(RING + 4 * k) for k in range(R))
        self.borrowed = set()
        self.slot = {}
        self.vmq = []
        self.pre_load_hook = None
        self.borrow_limit = 208
        self.ready_stores = []

    def e(self, *ins):
        self.s.extend(ins)

    def vm(self, tag):
        self.vmq.append(tag)
        assert len(self.vmq) <= 63, "too many outstanding VMEM ops"

    def retire(self, tag):
        if tag in self.vmq:
            k = self.vmq.index(tag)
            self.vmq = self.vmq[k + 1:]

    def can_load(self):
        n = self.nload
        if n >= TILES_PER_WAVE:
            return False
        while self.free and self.free[0] in self.borrowed and n >= self.borrow_limit:
            self.free.popleft()
        if not self.free:
            return False
        need = 1 + (4 if (self.pre_load_hook and self.hook_test(n)) else 0)
        return len(self.vmq) + need <= 61

    def wload_instrs(self):
        if not self.can_load():
            return []
        n = self.nload
        o = []
        if self.pre_load_hook:
            o += self.pre_load_hook(n)
        if n % 4 == 0 and n > 0:
            o.append(salu("s_add_u32 %s, %s, 4096" % (sWOFF, sWOFF)))
        base = self.free.popleft()
        self.slot[n] = base
        o.append(buf_load(base, 4, vW16, sWP, sWOFF, (n % 4) * 1024))
        self.vm(("w", n))
        self.nload += 1
        return o

    def release(self, n, give_back=True):
        base = self.slot[n]
        if give_back(base) if callable(give_back) else give_back:
            self.free.append(base)

    def wslot(self, n):
        return self.slot[n]

    def xfrag_read(self, kstep, p, rf):
        q, m = p // 4, p % 4
        hi = 1 if q >= 4 else 0
        return ds_read(A(XF + 16 * (kstep & 1) + 4 * rf), 4, vXA + m + 4 * hi, (q % 4) * 16384 + rf * 4096)

    def xfrag(self, kstep, rf):
        return A(XF + 16 * (kstep & 1) + 4 * rf)


def gen_main_prologue_text():
    return f"""
.globl {KMAIN}
.p2align 8
.type {KMAIN},@function
{KMAIN}:
  s_cmp_ge_u32 s2, {NWG}
  s_cbranch_scc1 Lmain_end
  s_load_dwordx2 s[28:29], s[0:1], 0       ; x0
  s_load_dwordx2 s[30:31], s[0:1], 16      ; bs
  s_load_dwordx2 s[32:33], s[0:1], 24      ; out
  s_load_dwordx2 s[34:35], s[0:1], 40      ; d_ws
  v_lshrrev_b32 v1, 6, v0
  v_and_b32 v2, 63, v0                     ; lane
  v_and_b32 v3, 15, v2                     ; i
  v_lshrrev_b32 v4, 4, v2                  ; g
  s_nop 0
  v_readfirstlane_b32 {sWAVE}, v1
  s_mov_b32 s24, {16 * ROWB}
  s_mov_b32 s25, {32 * ROWB}
  s_mov_b32 s26, {48 * ROWB}
  s_mov_b32 {sMASK}, 0xffff0000
  s_mov_b32 s22, 4096
  s_mul_i32 s36, s2, {ROWS * ROWB}
  s_mul_i32 {sWOFF}, {sWAVE}, {TILES_PER_WAVE * 1024}
"""


def gen_main_srd_text():
    return f"""
  s_waitcnt lgkmcnt(0)
  s_add_u32 s4, s28, s36
  s_addc_u32 s5, s29, 0
  s_and_b32 s5, s5, 0xffff
  s_mov_b32 s6, {ROWS * ROWB}
  s_mov_b32 s7, 0x00020000
  s_mov_b32 s8, s34
  s_and_b32 s9, s35, 0xffff
  s_mov_b32 s10, {WP_BYTES}
  s_mov_b32 s11, 0x00020000
  s_add_u32 s12, s32, s36
  s_addc_u32 s13, s33, 0
  s_and_b32 s13, s13, 0xffff
  s_mov_b32 s14, {ROWS * ROWB}
  s_mov_b32 s15, 0x00020000
  s_mov_b32 s16, s30
  s_and_b32 s17, s31, 0xffff
  s_mov_b32 s18, {L * D * 2}
  s_mov_b32 s19, 0x00020000
"""


def gen_main():
    g0 = Gen()
    e = g0.e
    vtid, vwv, vlane, vi, vg = 0, 1, 2, 3, 4
    t0, t1, t2, t3 = vT, vT + 1, vT + 2, vT + 3
    if X_STAMP:
        e(stamp(0))
        e(stamp(14, real=True))
    e(valu("v_lshlrev_b32", vW16, "4", vlane))
    e(valu("v_xor_b32", t0, vg, vi))
    e(valu("v_lshlrev_b32", t0, "4", t0))
    e(valu("v_lshl_add_u32", t0, vi, "8", t0))
    for m in range(4):
        e(valu("v_xor_b32", vXA + m, str(m << 6), t0))
        e(valu("v_add_u32", vXA + 4 + m, "0x10000", vXA + m))
        e(valu("v_lshl_add_u32", vEA + m, vwv, "14", vXA + m))
    e(valu("v_and_b32", t2, "1", vwv))
    e(valu("v_lshlrev_b32", t2, "7", t2))
    e(valu("v_xor_b32", t2, t2, t0))
    e(valu("v_lshrrev_b32", t3, "1", vwv))
    e(valu("v_add_u32", t3, "4", t3))
    e(valu("v_lshl_add_u32", vEB + 0, t3, "14", t2))
    e(valu("v_xor_b32", vEB + 1, "64", vEB + 0))
    e(valu("v_lshrrev_b32", t2, "1", vg))
    e(valu("v_lshl_add_u32", t2, vwv, "1", t2))
    e(valu("v_xor_b32", t2, t2, vi))
    e(valu("v_lshlrev_b32", t2, "4", t2))
    e(valu("v_lshl_add_u32", t2, vi, "8", t2))
    e(valu("v_and_b32", t3, "1", vg))
    e(valu("v_lshl_add_u32", t2, t3, "3", t2))
    e(valu("v_add_u32", vES, str(6 * 16384), t2))
    e(valu("v_mul_u32_u24", t2, str(ROWB), vi))
    e(valu("v_lshl_add_u32", t3, vg, "4", t2))
    e(valu("v_mul_u32_u24", vOG, "384", vwv))
    e(valu("v_add_u32", vOG, vOG, t3))
    e(valu("v_lshl_add_u32", t3, vg, "3", t2))
    e(valu("v_lshl_add_u32", t3, vwv, "5", t3))
    e(valu("v_add_u32", vOS, "1536", t3))
    e(valu("v_mul_u32_u24", t2, "768", vwv))
    e(valu("v_lshl_add_u32", t2, vg, "5", t2))
    e(valu("v_add_u32", vBA, str(BIAS_BASE), t2))
    e(valu("v_lshlrev_b32", t2, "6", vwv))
    e(valu("v_lshl_add_u32", t2, vg, "4", t2))
    e(valu("v_add_u32", vBS, str(BIAS_BASE + 768 * 4), t2))
    pr, pc = vT + 4, vT + 5
    pVA, pVB, pVC, pVL, pVLh, pBo, pBl = vT + 6, vT + 7, vT + 8, vT + 9, vT + 10, vT + 11, vT + 12
    e(valu("v_lshrrev_b32", pr, "4", vtid))
    e(valu("v_and_b32", pc, "15", vtid))
    e(valu("v_mul_u32_u24", t2, str(ROWB), pr))
    e(valu("v_lshl_add_u32", pVA, pc, "4", t2))
    e(valu("v_add_u32", pVB, "256", pVA))
    e(valu("v_add_u32", t3, "512", pVA))
    e(raw("v_cmp_gt_u32 vcc, 8, %s" % rname(pc), "raw", reads=[pc]))
    e(raw("s_nop 1"))
    e(raw("v_cndmask_b32 %s, %s, %s, vcc" % (rname(pVB), rname(t3), rname(pVB)), "valu", reads=[t3, pVB], writes=[pVB]))
    e(valu("v_add_u32", pVC, "1536", pVA))
    e(valu("v_xor_b32", t2, pc, pr))
    e(valu("v_lshlrev_b32", t2, "4", t2))
    e(valu("v_lshl_add_u32", pVL, pr, "8", t2))
    e(valu("v_add_u32", pVLh, "0x10000", pVL))
    e(valu("v_lshlrev_b32", pBo, "2", vtid))
    e(valu("v_lshlrev_b32", pBl, "3", vtid))
    e(valu("v_add_u32", pBl, str(BIAS_BASE), pBl))
    part1 = render(g0.s)

    g = Gen()
    e = g.e
    st = {"kstep": 0, "ntile": 0, "pend": 0}
    STG = [acc(8, 0), acc(8, 0) + 16, acc(8, 0) + 32]
    bstage = acc(12, 1)

    def x0_load(q, it):
        if q < 4:
            va, imm = pVA, 384 * q
        elif q < 6:
            va, imm = pVB, 768 * (q - 4)
        else:
            va, imm = pVC, 0
        ins = buf_load(STG[q % 3] + 4 * it, 4, va, sX0, sRF[it], imm)
        if X_XPOL:
            ins.text += " " + X_XPOL
        g.vm(("x", q, it))
        return ins

    def x0_loads(q):
        return [x0_load(q, it) for it in range(4)]

    def x0_writes(q):
        o = []
        for it in range(4):
            if q < 4:
                o.append(ds_write(pVL, STG[q % 3] + 4 * it, 4, q * 16384 + it * 4096))
            else:
                o.append(ds_write(pVLh, STG[q % 3] + 4 * it, 4, (q - 4) * 16384 + it * 4096))
        return o

    def bias_read(l, c):
        if c < 12:
            return ds_read(bias_reg(c), 4, vBA, l * 3328 + 128 * (c // 2) + 16 * (c % 2))
        return ds_read(bias_reg(c), 4, vBS, l * 3328)

    for kk in range(5):
        if kk < 4:
            e(buf_load(bstage + kk, 1, pBo, sBS, "0", 1024 * kk))
        else:
            e(buf_load(bstage + kk, 1, pBo, sBS, "s22", 0))
        g.vm(("b", kk))
    if X_DEEP0:
        for k in range(26):
            b = A(X0C + 4 * k)
            g.free.append(b)
            g.borrowed.add(b)
        e(*x0_loads(0))
        xsched = {}
        for q in range(1, 7):
            for it in range(4):
                n_ = 32 * q - XLEAD + XSTEP * it
                if n_ < 0:
                    e(x0_load(q, it))
                else:
                    xsched.setdefault(n_, []).append((q, it))

        def hook(n):
            return [x0_load(q, it) for (q, it) in xsched.get(n, [])]
        g.pre_load_hook = hook
        g.hook_test = lambda n: n in xsched
        while g.can_load() and g.nload < 64:
            e(*g.wload_instrs())
        e(*x0_writes(0))
        g.retire(("x", 0, 3))
    else:
        xs = []
        for q in range(7):
            pass
        raise NotImplementedError
    for kk in range(5):
        e(valu("v_lshlrev_b32", t0, "16", bstage + kk))
        e(valu("v_and_b32", t1, sMASK, bstage + kk))
        e(ds_write(pBl, t0, 2, 2048 * kk))
    e(barrier())

    XS = [vT + 0, vT + 4]
    TP = [vT + 8, vT + 10, vT + 12, vT + 14]
    U = vT + 16

    def ldsaddr(P):
        return (vEA + P) if P < 4 else (vEB + P - 4)

    def item_valu(l, P, rf, X, dst):
        o = []
        nd = 4 if P < 6 else 2
        for d in range(nd):
            if P < 6:
                ap = acc(2 * P + d // 2, rf) + 2 * (d % 2)
            else:
                ap = acc(12, rf) + 2 * d
            T = TP[d & 1]
            o.append(valu("v_lshlrev_b32", T, "16", X + d))
            o.append(valu("v_and_b32", T + 1, sMASK, X + d))
            if l == 0:
                o.append(valu("v_accvgpr_write_b32", x0reg(P, rf, d), X + d))
                o.append(valu("v_fma_f32", T, T, ap, T))
                o.append(valu("v_fma_f32", T + 1, T + 1, ap + 1, T + 1))
            else:
                U2 = TP[2 + (d & 1)]
                o.append(valu("v_accvgpr_read_b32", U, x0reg(P, rf, d)))
                o.append(valu("v_lshlrev_b32", U2, "16", U))
                o.append(valu("v_and_b32", U2 + 1, sMASK, U))
                o.append(valu("v_fma_f32", T, U2, ap, T))
                o.append(valu("v_fma_f32", T + 1, U2 + 1, ap + 1, T + 1))
            o.append(valu("v_cvt_pk_bf16_f32", dst(d), T, T + 1))
        return o

    def store_instr(X, P, rf):
        g_tag = ("s", P, rf)
        if P < 6:
            ins = buf_store(X, 4, vOG, sOUT, sRF[rf], 64 * P)
        else:
            ins = buf_store(X, 2, vOS, sOUT, sRF[rf], 0)
        if X_SPOL:
            ins.text += " " + X_SPOL
        return ins

    def E0_side(l):
        o = []
        items = [(P, rf) for P in range(4) for rf in range(4)]
        o.append(ds_read(XS[0], 4, ldsaddr(0), 0))
        for idx, (P, rf) in enumerate(items):
            if idx + 1 < len(items):
                P2, r2 = items[idx + 1]
                o.append(ds_read(XS[(idx + 1) & 1], 4, ldsaddr(P2), r2 * 4096))
            X = XS[idx & 1]
            c0 = 2 * P
            o += item_valu(l, P, rf, X, lambda d: acc(c0, rf) + d)
            if l == L - 1:
                o.append(Call(lambda P=P, rf=rf, c0=c0: g.ready_stores.append(store_instr(acc(c0, rf), P, rf))))
                if rf == 3 and X_GROW2:
                    def grow(c0=c0):
                        for r4 in range(4):
                            g.free.append(acc(c0 + 1, r4))
                    o.append(Call(grow))
            if rf == 3 and l < L - 1:
                o.append(bias_read(l + 1, c0))
                o.append(bias_read(l + 1, c0 + 1))
        return o

    def E1_side(l):
        o = []
        items = [(P, rf) for P in (4, 5) for rf in range(4)] + [(6, rf) for rf in range(4)]

        def rd(idx):
            P, rf = items[idx]
            if P < 6:
                return ds_read(XS[idx & 1], 4, ldsaddr(P), rf * 4096)
            return ds_read(XS[idx & 1], 2, vES, rf * 4096)
        o.append(rd(0))
        for idx, (P, rf) in enumerate(items):
            if idx + 1 < len(items):
                o.append(rd(idx + 1))
            X = XS[idx & 1]
            o += item_valu(l, P, rf, X, lambda d: X + d)
            if l < L - 1:
                if P < 6:
                    o.append(ds_write(ldsaddr(P), X, 4, rf * 4096))
                else:
                    o.append(ds_write(vES, X, 2, rf * 4096))
            else:
                o.append(store_instr(X, P, rf))
        if l < L - 1:
            for c in range(8, 13):
                o.append(bias_read(l + 1, c))
        return o

    def phase(tiles, side, side_steps, barrier_at=(), extra=None, prefetch_next=True, first_reads=True,
              give_back=True, maxrefill=1, stamp_at=None):
        nt = len(tiles)
        extra = extra or {}
        nreal = sum(1 for x in side if not isinstance(x, Call))
        ntiles_side = nt * side_steps
        rate = (nreal / float(ntiles_side)) if ntiles_side else 0.0
        quota = 0.0
        si = [0]

        def take(n):
            out = []
            cnt_ = 0
            while si[0] < len(side) and (cnt_ < n or isinstance(side[si[0]], Call)):
                x = side[si[0]]
                si[0] += 1
                out.append(x)
                if not isinstance(x, Call):
                    cnt_ += 1
            return out

        def emit_list(lst):
            for x in lst:
                if isinstance(x, Call):
                    x.fn()
                else:
                    e(x)

        if first_reads:
            for rf in range(4):
                e(g.xfrag_read(st["kstep"], 0, rf))
        for p in range(NP):
            if p in barrier_at:
                if stamp_at and p in stamp_at:
                    e(stamp(stamp_at[p]))
                e(barrier())
            ex_p = list(extra.get(p, []))
            for idx, c in enumerate(tiles):
                n = st["ntile"]
                ws_ = g.wslot(n)
                if p == 0:
                    order = [(rf, bias_reg(c)) for rf in (3, 2, 1, 0)]
                else:
                    order = [(rf, acc(c, rf)) for rf in range(4)]
                nside = 0
                if p < side_steps:
                    quota += rate
                    nside = int(quota + 1e-9)
                    quota -= nside
                fixed0 = []
                for _ in range(min(st["pend"], maxrefill) if st["pend"] else 0):
                    fixed0 += g.wload_instrs()
                k2 = 0
                while st["pend"] and k2 < maxrefill - 1 and g.can_load():
                    fixed0 += g.wload_instrs(); k2 += 1
                st["pend"] = 0
                fixed1 = []
                if 1 <= idx <= 4:
                    if p + 1 < NP:
                        fixed1.append(g.xfrag_read(st["kstep"] + 1, p + 1, idx - 1))
                    elif prefetch_next:
                        fixed1.append(g.xfrag_read(st["kstep"] + 1, 0, idx - 1))
                if ex_p:
                    fixed1.append(ex_p.pop(0))
                if g.ready_stores and g.nload >= TILES_PER_WAVE:
                    fixed1.append(g.ready_stores.pop(0))
                sd = take(nside) if nside else []
                nsd = sum(1 for x in sd if not isinstance(x, Call))
                cap = [max(0, 2 - len(fixed0)), max(0, 2 - len(fixed1)), 2, 1]
                cnt = [0, 0, 0, 0]
                k = 0
                for gi in (2, 1, 0, 3):
                    m_ = min(cap[gi], nsd - k)
                    cnt[gi] += m_
                    k += m_
                gi = 0
                while k < nsd:
                    cnt[gi % 4] += 1; k += 1; gi += 1
                kk = 0
                for j, (rf, csrc) in enumerate(order):
                    m = mfma16(acc(c, rf), ws_, g.xfrag(st["kstep"], rf), csrc)
                    exr = []
                    if j == 0 and (n % 2 == 0) and (n + 1) in g.slot:
                        exr += regs(g.wslot(n + 1), 4)
                        g.retire(("w", n + 1))
                    elif j == 0:
                        g.retire(("w", n))
                    if j == 0 and idx == 0:
                        for r2 in range(4):
                            exr += regs(g.xfrag(st["kstep"], r2), 4)
                    m.extra = frozenset(exr)
                    e(m)
                    if j == 0:
                        e(*fixed0)
                    if j == 1:
                        e(*fixed1)
                    c_ = cnt[j]
                    while kk < len(sd) and (c_ > 0 or isinstance(sd[kk], Call)):
                        if isinstance(sd[kk], Call):
                            sd[kk].fn()
                        else:
                            e(sd[kk]); c_ -= 1
                        kk += 1
                g.release(n, give_back)
                st["pend"] = 1
                st["ntile"] += 1
            emit_list(ex_p)
            if p == side_steps - 1:
                emit_list(side[si[0]:]); si[0] = len(side)
            st["kstep"] += 1

    for c in range(8):
        e(bias_read(0, c))
    extra = {}
    bar = []
    for q in range(1, 7):
        extra[4 * q - 2] = x0_writes(q)
        bar.append(4 * q - 1)
    extra[24] = [bias_read(0, c) for c in range(8, 13)]
    if X_STAMP:
        e(stamp(1))
    phase(PASSES[0], [], 0, barrier_at=tuple(bar), extra=extra,
          give_back=lambda b: not (b in g.borrowed and g.nload >= 208), maxrefill=2,
          stamp_at=({3: 2, 7: 3, 11: 4, 15: 5, 19: 6, 23: 7} if X_STAMP == 3 else None))
    g.free = deque(b for b in g.free if b not in g.borrowed)
    assert all(g.slot[n] not in g.borrowed for n in range(208, g.nload))
    g.pre_load_hook = None
    for l in range(L):
        if l > 0:
            if X_STAMP and X_STAMP != 3:
                e(stamp(1 + 3 * l))
            phase(PASSES[0], E1_side(l - 1), 13, barrier_at=(14,))
        if X_STAMP and X_STAMP != 3:
            e(stamp(2 + 3 * l))
        if X_STAMP == 3 and l == 0:
            e(stamp(8))
        phase(PASSES[1], E0_side(l), NP, prefetch_next=False, first_reads=False,
              maxrefill=2 if l == L - 1 else 1)
        if X_STAMP and X_STAMP != 3:
            e(stamp(3 + 3 * l))
        if l < L - 1:
            e(barrier())
            for P in range(4):
                for rf in range(4):
                    e(ds_write(ldsaddr(P), acc(2 * P, rf), 4, rf * 4096))
            e(barrier())
        else:
            e(*g.ready_stores)
            g.ready_stores = []
            e(*E1_side(l))
    if X_STAMP:
        e(drain_vm())
        e(stamp(10))
        e(stamp(15, real=True))
        e(raw("s_cmp_ge_u32 s2, %d" % (256 if X_STAMP == 2 else 16)))
        e(raw("s_cbranch_scc1 Lmain_end"))
        e(raw("s_load_dwordx2 s[36:37], s[0:1], 32"))
        e(raw("s_waitcnt lgkmcnt(0)"))
        e(raw("s_mov_b32 s40, s36"))
        e(raw("s_and_b32 s41, s37, 0xffff"))
        e(raw("s_mov_b32 s42, 65536"))
        e(raw("s_mov_b32 s43, 0x00020000"))
        e(raw("s_lshl_b32 s44, s2, 2"))
        e(raw("s_add_u32 s44, s44, %s" % sWAVE))
        e(raw("s_lshl_b32 s44, s44, 6"))
        e(raw("v_mov_b32 v1, 0"))
        for k in range(16):
            e(raw("v_mov_b32 v2, s%d" % (64 + 2 * k)))
            e(raw("buffer_store_dword v2, v1, s[40:43], s44 offen offset:%d" % (4 * k)))
    s = insert_waits(g.s)
    s = pad_hazards(s, verbose=True)
    txt = gen_main_prologue_text() + part1 + gen_main_srd_text() + render(s) + "\nLmain_end:\n  s_endpgm\n"
    return txt


def main():
    out = sys.argv[1] if len(sys.argv) > 1 else "standalone__cross_network_dcn__recsys.s"
    hdr = f"""; DCN-v2 cross network, 3 fused layers, bf16 MFMA (hand-designed schedule, emitted by my own generator script).
; @launch kernel={KPREP} grid=({NP},12,1) block=(832,1,1) lds=0
; @launch kernel={KMAIN} grid=({NWG},1,1) block=(256,1,1) lds={LDS_BYTES}
.amdgcn_target "amdgcn-amd-amdhsa--gfx950"
.text
"""
    txt = hdr + gen_prep() + gen_main()
    txt += '.section .rodata,"a"\n.p2align 6\n'
    txt += DESC.format(name=KPREP, nvgpr=32, nsgpr=48, accoff=32, extra="  .amdhsa_system_sgpr_workgroup_id_y 1\n")
    txt += ".p2align 6\n"
    txt += DESC.format(name=KMAIN, nvgpr=512, nsgpr=100, accoff=256, extra="")
    open(out, "w").write(txt)
    print("wrote", out, len(txt), "bytes")


if __name__ == "__main__":
    main()
```

```python
import sys, os
from collections import deque
from fw import *

X_STAMP = int(os.environ.get("X_STAMP", "0"))
X_DEEP0 = int(os.environ.get("X_DEEP0", "1"))
X_GROW2 = int(os.environ.get("X_GROW2", "1"))
X_XPOL = os.environ.get("X_XPOL", "")
X_SPOL = os.environ.get("X_SPOL", "")
XSTEP = int(os.environ.get("XSTEP", "8"))
XLEAD = int(os.environ.get("XLEAD", "48"))

NB, D, L = 16384, 832, 3
ROWS = 64
NWG = NB // ROWS
ROWB = D * 2
NP = 26
NT = 13
TILES_PER_LAYER = NP * NT
TILES_PER_WAVE = L * TILES_PER_LAYER
WP_BYTES = 4 * TILES_PER_WAVE * 1024
XT_BYTES = 7 * 16384
BIAS_BASE = XT_BYTES
LDS_BYTES = XT_BYTES + 10240
KMAIN = "standalone__cross_network_dcn__recsys_kernel"
KPREP = "dcn_prep_kernel"


def kb_of_p(p):
    if p < 16:
        return 6 * (p // 4) + (p % 4)
    p2 = p - 16
    if p2 < 8:
        return 6 * (p2 // 2) + 4 + (p2 % 2)
    return 24 + (p2 - 8)


def feat(w, c, i):
    if c < 12:
        return 192 * w + 32 * (c // 2) + 8 * (i // 4) + 4 * (c % 2) + (i % 4)
    return 768 + 16 * w + i


PASSES = [list(range(8)), list(range(8, 13))]


def stream_index(p, c):
    base = 0
    for tl in PASSES:
        if c in tl:
            return base + p * len(tl) + tl.index(c)
        base += NP * len(tl)
    raise ValueError


def gen_prep():
    return f"""
.globl {KPREP}
.p2align 8
.type {KPREP},@function
{KPREP}:
  s_cmp_ge_u32 s2, {NP}
  s_cbranch_scc1 Lprep_end
  s_load_dwordx2 s[4:5], s[0:1], 8
  s_load_dwordx2 s[6:7], s[0:1], 40      ; d_ws
  v_lshrrev_b32 v1, 6, v0
  v_and_b32 v2, 63, v0                   ; lane
  v_and_b32 v3, 15, v2                   ; i
  v_lshrrev_b32 v4, 4, v2                ; g
  s_nop 0
  v_readfirstlane_b32 s9, v1             ; c
  s_lshr_b32 s10, s3, 2                  ; l
  s_and_b32 s11, s3, 3                   ; w
  ; kb(p)
  s_lshr_b32 s12, s2, 2
  s_mul_i32 s12, s12, 6
  s_and_b32 s13, s2, 3
  s_add_u32 s12, s12, s13                ; p<16
  s_sub_u32 s13, s2, 16                  ; p2
  s_lshr_b32 s14, s13, 1
  s_mul_i32 s14, s14, 6
  s_and_b32 s15, s13, 1
  s_add_u32 s14, s14, s15
  s_add_u32 s14, s14, 4                  ; 16<=p<24
  s_cmp_lt_u32 s2, 16
  s_cselect_b32 s12, s12, s14
  s_cmp_lt_u32 s2, 24
  s_cselect_b32 s12, s12, s2             ; p>=24 : kb = p
  ; featbase = c<12 ? 192w + 32(c>>1) + 4(c&1) : 768 + 16w
  s_mul_i32 s13, s11, 192
  s_lshr_b32 s14, s9, 1
  s_lshl_b32 s14, s14, 5
  s_add_u32 s13, s13, s14
  s_and_b32 s14, s9, 1
  s_lshl_b32 s14, s14, 2
  s_add_u32 s13, s13, s14
  s_lshl_b32 s14, s11, 4
  s_add_u32 s14, s14, 768
  s_cmp_lt_u32 s9, 12
  s_cselect_b32 s13, s13, s14            ; featbase
  v_lshrrev_b32 v5, 2, v3
  v_lshlrev_b32 v5, 3, v5
  v_and_b32 v6, 3, v3
  v_add_u32 v5, v5, v6                   ; 8*(i>>2) + (i&3)
  v_cmp_gt_u32 vcc, 12, v1
  s_nop 1
  v_cndmask_b32 v5, v3, v5, vcc          ; c<12 ? .. : i
  v_lshlrev_b32 v5, 1, v5                ; *2 bytes
  v_mul_u32_u24 v6, 13312, v4            ; 8*g*1664
  v_add_u32 v5, v5, v6                   ; voffset
  v_lshlrev_b32 v7, 4, v2                ; lane*16
  s_waitcnt lgkmcnt(0)
  s_mov_b32 s24, s4
  s_and_b32 s25, s5, 0xffff
  s_mov_b32 s26, {L * D * ROWB}
  s_mov_b32 s27, 0x00020000
  s_mov_b32 s28, s6
  s_and_b32 s29, s7, 0xffff
  s_mov_b32 s30, {WP_BYTES}
  s_mov_b32 s31, 0x00020000
  s_mul_i32 s14, s10, {D * ROWB}
  s_mul_i32 s15, s12, {32 * ROWB}
  s_add_u32 s14, s14, s15
  s_lshl_b32 s15, s13, 1
  s_add_u32 s32, s14, s15
  s_add_u32 s33, s32, {ROWB}
  s_add_u32 s34, s33, {ROWB}
  s_add_u32 s35, s34, {ROWB}
  s_add_u32 s36, s35, {ROWB}
  s_add_u32 s37, s36, {ROWB}
  s_add_u32 s38, s37, {ROWB}
  s_add_u32 s39, s38, {ROWB}
  buffer_load_ushort v10, v5, s[24:27], s32 offen
  buffer_load_ushort v11, v5, s[24:27], s33 offen
  buffer_load_ushort v12, v5, s[24:27], s34 offen
  buffer_load_ushort v13, v5, s[24:27], s35 offen
  buffer_load_ushort v14, v5, s[24:27], s36 offen
  buffer_load_ushort v15, v5, s[24:27], s37 offen
  buffer_load_ushort v16, v5, s[24:27], s38 offen
  buffer_load_ushort v17, v5, s[24:27], s39 offen
  s_lshl_b32 s20, s2, 3
  s_add_u32 s20, s20, s9
  s_mul_i32 s21, s2, 5
  s_add_u32 s21, s21, s9
  s_add_u32 s21, s21, 200
  s_cmp_lt_u32 s9, 8
  s_cselect_b32 s20, s20, s21
  s_mul_i32 s21, s11, {TILES_PER_WAVE}
  s_add_u32 s20, s20, s21
  s_mul_i32 s21, s10, {TILES_PER_LAYER}
  s_add_u32 s20, s20, s21
  s_lshl_b32 s20, s20, 10
  s_waitcnt vmcnt(0)
  v_lshl_or_b32 v20, v11, 16, v10
  v_lshl_or_b32 v21, v13, 16, v12
  v_lshl_or_b32 v22, v15, 16, v14
  v_lshl_or_b32 v23, v17, 16, v16
  buffer_store_dwordx4 v[20:23], v7, s[28:31], s20 offen
Lprep_end:
  s_endpgm
"""


DESC = """
.amdhsa_kernel {name}
  .amdhsa_next_free_vgpr {nvgpr}
  .amdhsa_next_free_sgpr {nsgpr}
  .amdhsa_accum_offset {accoff}
  .amdhsa_group_segment_fixed_size 0
  .amdhsa_kernarg_size 48
  .amdhsa_user_sgpr_count 2
  .amdhsa_user_sgpr_kernarg_segment_ptr 1
  .amdhsa_system_sgpr_workgroup_id_x 1
{extra}.end_amdhsa_kernel
"""

ACC = 0


def acc(c, rf):
    return ACC + (c * 4 + rf) * 4


def bias_reg(c):
    if c < 8:
        c1 = c | 1
        return acc(c1, 1) if (c & 1) == 0 else acc(c1, 0)
    return acc(c, 0)


VM = 208
vW16 = VM + 0
vXA = VM + 1
vEA = VM + 9
vEB = VM + 13
vES = VM + 15
vOG = VM + 16
vOS = VM + 17
vBA = VM + 18
vBS = VM + 19
vT = VM + 20
RING = 0
R = 26
XF = 104
X0C = 136

sX0 = "s[4:7]"
sWP = "s[8:11]"
sOUT = "s[12:15]"
sBS = "s[16:19]"
sWOFF = "s20"
sWAVE = "s21"
sRF = ["0", "s24", "s25", "s26"]
sMASK = "s27"


def x0reg(P, rf, d):
    if P < 6:
        return A(X0C + (P * 4 + rf) * 4 + d)
    return A(X0C + 96 + rf * 2 + d)


class Call:
    def __init__(self, fn):
        self.fn = fn


class Gen:
    def __init__(self):
        self.s = []
        self.nload = 0
        self.free = deque(A(RING + 4 * k) for k in range(R))
        self.borrowed = set()
        self.slot = {}
        self.vmq = []
        self.pre_load_hook = None
        self.borrow_limit = 208
        self.ready_stores = []

    def e(self, *ins):
        self.s.extend(ins)

    def vm(self, tag):
        self.vmq.append(tag)
        assert len(self.vmq) <= 63, "too many outstanding VMEM ops"

    def retire(self, tag):
        if tag in self.vmq:
            k = self.vmq.index(tag)
            self.vmq = self.vmq[k + 1:]

    def can_load(self):
        n = self.nload
        if n >= TILES_PER_WAVE:
            return False
        while self.free and self.free[0] in self.borrowed and n >= self.borrow_limit:
            self.free.popleft()
        if not self.free:
            return False
        need = 1 + (4 if (self.pre_load_hook and self.hook_test(n)) else 0)
        return len(self.vmq) + need <= 61

    def wload_instrs(self):
        if not self.can_load():
            return []
        n = self.nload
        o = []
        if self.pre_load_hook:
            o += self.pre_load_hook(n)
        if n % 4 == 0 and n > 0:
            o.append(salu("s_add_u32 %s, %s, 4096" % (sWOFF, sWOFF)))
        base = self.free.popleft()
        self.slot[n] = base
        o.append(buf_load(base, 4, vW16, sWP, sWOFF, (n % 4) * 1024))
        self.vm(("w", n))
        self.nload += 1
        return o

    def release(self, n, give_back=True):
        base = self.slot[n]
        if give_back(base) if callable(give_back) else give_back:
            self.free.append(base)

    def wslot(self, n):
        return self.slot[n]

    def xfrag_read(self, kstep, p, rf):
        q, m = p // 4, p % 4
        hi = 1 if q >= 4 else 0
        return ds_read(A(XF + 16 * (kstep & 1) + 4 * rf), 4, vXA + m + 4 * hi, (q % 4) * 16384 + rf * 4096)

    def xfrag(self, kstep, rf):
        return A(XF + 16 * (kstep & 1) + 4 * rf)


def gen_main_prologue_text():
    return f"""
.globl {KMAIN}
.p2align 8
.type {KMAIN},@function
{KMAIN}:
  s_cmp_ge_u32 s2, {NWG}
  s_cbranch_scc1 Lmain_end
  s_load_dwordx2 s[28:29], s[0:1], 0       ; x0
  s_load_dwordx2 s[30:31], s[0:1], 16      ; bs
  s_load_dwordx2 s[32:33], s[0:1], 24      ; out
  s_load_dwordx2 s[34:35], s[0:1], 40      ; d_ws
  v_lshrrev_b32 v1, 6, v0
  v_and_b32 v2, 63, v0                     ; lane
  v_and_b32 v3, 15, v2                     ; i
  v_lshrrev_b32 v4, 4, v2                  ; g
  s_nop 0
  v_readfirstlane_b32 {sWAVE}, v1
  s_mov_b32 s24, {16 * ROWB}
  s_mov_b32 s25, {32 * ROWB}
  s_mov_b32 s26, {48 * ROWB}
  s_mov_b32 {sMASK}, 0xffff0000
  s_mov_b32 s22, 4096
  s_mul_i32 s36, s2, {ROWS * ROWB}
  s_mul_i32 {sWOFF}, {sWAVE}, {TILES_PER_WAVE * 1024}
"""


def gen_main_srd_text():
    return f"""
  s_waitcnt lgkmcnt(0)
  s_add_u32 s4, s28, s36
  s_addc_u32 s5, s29, 0
  s_and_b32 s5, s5, 0xffff
  s_mov_b32 s6, {ROWS * ROWB}
  s_mov_b32 s7, 0x00020000
  s_mov_b32 s8, s34
  s_and_b32 s9, s35, 0xffff
  s_mov_b32 s10, {WP_BYTES}
  s_mov_b32 s11, 0x00020000
  s_add_u32 s12, s32, s36
  s_addc_u32 s13, s33, 0
  s_and_b32 s13, s13, 0xffff
  s_mov_b32 s14, {ROWS * ROWB}
  s_mov_b32 s15, 0x00020000
  s_mov_b32 s16, s30
  s_and_b32 s17, s31, 0xffff
  s_mov_b32 s18, {L * D * 2}
  s_mov_b32 s19, 0x00020000
"""


def gen_main():
    g0 = Gen()
    e = g0.e
    vtid, vwv, vlane, vi, vg = 0, 1, 2, 3, 4
    t0, t1, t2, t3 = vT, vT + 1, vT + 2, vT + 3
    if X_STAMP:
        e(stamp(0))
        e(stamp(14, real=True))
    e(valu("v_lshlrev_b32", vW16, "4", vlane))
    e(valu("v_xor_b32", t0, vg, vi))
    e(valu("v_lshlrev_b32", t0, "4", t0))
    e(valu("v_lshl_add_u32", t0, vi, "8", t0))
    for m in range(4):
        e(valu("v_xor_b32", vXA + m, str(m << 6), t0))
        e(valu("v_add_u32", vXA + 4 + m, "0x10000", vXA + m))
        e(valu("v_lshl_add_u32", vEA + m, vwv, "14", vXA + m))
    e(valu("v_and_b32", t2, "1", vwv))
    e(valu("v_lshlrev_b32", t2, "7", t2))
    e(valu("v_xor_b32", t2, t2, t0))
    e(valu("v_lshrrev_b32", t3, "1", vwv))
    e(valu("v_add_u32", t3, "4", t3))
    e(valu("v_lshl_add_u32", vEB + 0, t3, "14", t2))
    e(valu("v_xor_b32", vEB + 1, "64", vEB + 0))
    e(valu("v_lshrrev_b32", t2, "1", vg))
    e(valu("v_lshl_add_u32", t2, vwv, "1", t2))
    e(valu("v_xor_b32", t2, t2, vi))
    e(valu("v_lshlrev_b32", t2, "4", t2))
    e(valu("v_lshl_add_u32", t2, vi, "8", t2))
    e(valu("v_and_b32", t3, "1", vg))
    e(valu("v_lshl_add_u32", t2, t3, "3", t2))
    e(valu("v_add_u32", vES, str(6 * 16384), t2))
    e(valu("v_mul_u32_u24", t2, str(ROWB), vi))
    e(valu("v_lshl_add_u32", t3, vg, "4", t2))
    e(valu("v_mul_u32_u24", vOG, "384", vwv))
    e(valu("v_add_u32", vOG, vOG, t3))
    e(valu("v_lshl_add_u32", t3, vg, "3", t2))
    e(valu("v_lshl_add_u32", t3, vwv, "5", t3))
    e(valu("v_add_u32", vOS, "1536", t3))
    e(valu("v_mul_u32_u24", t2, "768", vwv))
    e(valu("v_lshl_add_u32", t2, vg, "5", t2))
    e(valu("v_add_u32", vBA, str(BIAS_BASE), t2))
    e(valu("v_lshlrev_b32", t2, "6", vwv))
    e(valu("v_lshl_add_u32", t2, vg, "4", t2))
    e(valu("v_add_u32", vBS, str(BIAS_BASE + 768 * 4), t2))
    pr, pc = vT + 4, vT + 5
    pVA, pVB, pVC, pVL, pVLh, pBo, pBl = vT + 6, vT + 7, vT + 8, vT + 9, vT + 10, vT + 11, vT + 12
    e(valu("v_lshrrev_b32", pr, "4", vtid))
    e(valu("v_and_b32", pc, "15", vtid))
    e(valu("v_mul_u32_u24", t2, str(ROWB), pr))
    e(valu("v_lshl_add_u32", pVA, pc, "4", t2))
    e(valu("v_add_u32", pVB, "256", pVA))
    e(valu("v_add_u32", t3, "512", pVA))
    e(raw("v_cmp_gt_u32 vcc, 8, %s" % rname(pc), "raw", reads=[pc]))
    e(raw("s_nop 1"))
    e(raw("v_cndmask_b32 %s, %s, %s, vcc" % (rname(pVB), rname(t3), rname(pVB)), "valu", reads=[t3, pVB], writes=[pVB]))
    e(valu("v_add_u32", pVC, "1536", pVA))
    e(valu("v_xor_b32", t2, pc, pr))
    e(valu("v_lshlrev_b32", t2, "4", t2))
    e(valu("v_lshl_add_u32", pVL, pr, "8", t2))
    e(valu("v_add_u32", pVLh, "0x10000", pVL))
    e(valu("v_lshlrev_b32", pBo, "2", vtid))
    e(valu("v_lshlrev_b32", pBl, "3", vtid))
    e(valu("v_add_u32", pBl, str(BIAS_BASE), pBl))
    part1 = render(g0.s)

    g = Gen()
    e = g.e
    st = {"kstep": 0, "ntile": 0, "pend": 0}
    STG = [acc(8, 0), acc(8, 0) + 16, acc(8, 0) + 32]
    bstage = acc(12, 1)

    def x0_load(q, it):
        if q < 4:
            va, imm = pVA, 384 * q
        elif q < 6:
            va, imm = pVB, 768 * (q - 4)
        else:
            va, imm = pVC, 0
        ins = buf_load(STG[q % 3] + 4 * it, 4, va, sX0, sRF[it], imm)
        if X_XPOL:
            ins.text += " " + X_XPOL
        g.vm(("x", q, it))
        return ins

    def x0_loads(q):
        return [x0_load(q, it) for it in range(4)]

    def x0_writes(q):
        o = []
        for it in range(4):
            if q < 4:
                o.append(ds_write(pVL, STG[q % 3] + 4 * it, 4, q * 16384 + it * 4096))
            else:
                o.append(ds_write(pVLh, STG[q % 3] + 4 * it, 4, (q - 4) * 16384 + it * 4096))
        return o

    def bias_read(l, c):
        if c < 12:
            return ds_read(bias_reg(c), 4, vBA, l * 3328 + 128 * (c // 2) + 16 * (c % 2))
        return ds_read(bias_reg(c), 4, vBS, l * 3328)

    for kk in range(5):
        if kk < 4:
            e(buf_load(bstage + kk, 1, pBo, sBS, "0", 1024 * kk))
        else:
            e(buf_load(bstage + kk, 1, pBo, sBS, "s22", 0))
        g.vm(("b", kk))
    if X_DEEP0:
        for k in range(26):
            b = A(X0C + 4 * k)
            g.free.append(b)
            g.borrowed.add(b)
        e(*x0_loads(0))
        xsched = {}
        for q in range(1, 7):
            for it in range(4):
                n_ = 32 * q - XLEAD + XSTEP * it
                if n_ < 0:
                    e(x0_load(q, it))
                else:
                    xsched.setdefault(n_, []).append((q, it))

        def hook(n):
            return [x0_load(q, it) for (q, it) in xsched.get(n, [])]
        g.pre_load_hook = hook
        g.hook_test = lambda n: n in xsched
        while g.can_load() and g.nload < 64:
            e(*g.wload_instrs())
        e(*x0_writes(0))
        g.retire(("x", 0, 3))
    else:
        xs = []
        for q in range(7):
            pass
        raise NotImplementedError
    for kk in range(5):
        e(valu("v_lshlrev_b32", t0, "16", bstage + kk))
        e(valu("v_and_b32", t1, sMASK, bstage + kk))
        e(ds_write(pBl, t0, 2, 2048 * kk))
    e(barrier())

    XS = [vT + 0, vT + 4]
    TP = [vT + 8, vT + 10, vT + 12, vT + 14]
    U = vT + 16

    def ldsaddr(P):
        return (vEA + P) if P < 4 else (vEB + P - 4)

    def item_valu(l, P, rf, X, dst):
        o = []
        nd = 4 if P < 6 else 2
        for d in range(nd):
            if P < 6:
                ap = acc(2 * P + d // 2, rf) + 2 * (d % 2)
            else:
                ap = acc(12, rf) + 2 * d
            T = TP[d & 1]
            o.append(valu("v_lshlrev_b32", T, "16", X + d))
            o.append(valu("v_and_b32", T + 1, sMASK, X + d))
            if l == 0:
                o.append(valu("v_accvgpr_write_b32", x0reg(P, rf, d), X + d))
                o.append(valu("v_fma_f32", T, T, ap, T))
                o.append(valu("v_fma_f32", T + 1, T + 1, ap + 1, T + 1))
            else:
                U2 = TP[2 + (d & 1)]
                o.append(valu("v_accvgpr_read_b32", U, x0reg(P, rf, d)))
                o.append(valu("v_lshlrev_b32", U2, "16", U))
                o.append(valu("v_and_b32", U2 + 1, sMASK, U))
                o.append(valu("v_fma_f32", T, U2, ap, T))
                o.append(valu("v_fma_f32", T + 1, U2 + 1, ap + 1, T + 1))
            o.append(valu("v_cvt_pk_bf16_f32", dst(d), T, T + 1))
        return o

    def store_instr(X, P, rf):
        g_tag = ("s", P, rf)
        if P < 6:
            ins = buf_store(X, 4, vOG, sOUT, sRF[rf], 64 * P)
        else:
            ins = buf_store(X, 2, vOS, sOUT, sRF[rf], 0)
        if X_SPOL:
            ins.text += " " + X_SPOL
        return ins

    def E0_side(l):
        o = []
        items = [(P, rf) for P in range(4) for rf in range(4)]
        o.append(ds_read(XS[0], 4, ldsaddr(0), 0))
        for idx, (P, rf) in enumerate(items):
            if idx + 1 < len(items):
                P2, r2 = items[idx + 1]
                o.append(ds_read(XS[(idx + 1) & 1], 4, ldsaddr(P2), r2 * 4096))
            X = XS[idx & 1]
            c0 = 2 * P
            o += item_valu(l, P, rf, X, lambda d: acc(c0, rf) + d)
            if l == L - 1:
                o.append(Call(lambda P=P, rf=rf, c0=c0: g.ready_stores.append(store_instr(acc(c0, rf), P, rf))))
                if rf == 3 and X_GROW2:
                    def grow(c0=c0):
                        for r4 in range(4):
                            g.free.append(acc(c0 + 1, r4))
                    o.append(Call(grow))
            if rf == 3 and l < L - 1:
                o.append(bias_read(l + 1, c0))
                o.append(bias_read(l + 1, c0 + 1))
        return o

    def E1_side(l):
        o = []
        items = [(P, rf) for P in (4, 5) for rf in range(4)] + [(6, rf) for rf in range(4)]

        def rd(idx):
            P, rf = items[idx]
            if P < 6:
                return ds_read(XS[idx & 1], 4, ldsaddr(P), rf * 4096)
            return ds_read(XS[idx & 1], 2, vES, rf * 4096)
        o.append(rd(0))
        for idx, (P, rf) in enumerate(items):
            if idx + 1 < len(items):
                o.append(rd(idx + 1))
            X = XS[idx & 1]
            o += item_valu(l, P, rf, X, lambda d: X + d)
            if l < L - 1:
                if P < 6:
                    o.append(ds_write(ldsaddr(P), X, 4, rf * 4096))
                else:
                    o.append(ds_write(vES, X, 2, rf * 4096))
            else:
                o.append(store_instr(X, P, rf))
        if l < L - 1:
            for c in range(8, 13):
                o.append(bias_read(l + 1, c))
        return o

    def phase(tiles, side, side_steps, barrier_at=(), extra=None, prefetch_next=True, first_reads=True,
              give_back=True, maxrefill=1, stamp_at=None):
        nt = len(tiles)
        extra = extra or {}
        nreal = sum(1 for x in side if not isinstance(x, Call))
        ntiles_side = nt * side_steps
        rate = (nreal / float(ntiles_side)) if ntiles_side else 0.0
        quota = 0.0
        si = [0]

        def take(n):
            out = []
            cnt_ = 0
            while si[0] < len(side) and (cnt_ < n or isinstance(side[si[0]], Call)):
                x = side[si[0]]
                si[0] += 1
                out.append(x)
                if not isinstance(x, Call):
                    cnt_ += 1
            return out

        def emit_list(lst):
            for x in lst:
                if isinstance(x, Call):
                    x.fn()
                else:
                    e(x)

        if first_reads:
            for rf in range(4):
                e(g.xfrag_read(st["kstep"], 0, rf))
        for p in range(NP):
            if p in barrier_at:
                if stamp_at and p in stamp_at:
                    e(stamp(stamp_at[p]))
                e(barrier())
            ex_p = list(extra.get(p, []))
            for idx, c in enumerate(tiles):
                n = st["ntile"]
                ws_ = g.wslot(n)
                if p == 0:
                    order = [(rf, bias_reg(c)) for rf in (3, 2, 1, 0)]
                else:
                    order = [(rf, acc(c, rf)) for rf in range(4)]
                nside = 0
                if p < side_steps:
                    quota += rate
                    nside = int(quota + 1e-9)
                    quota -= nside
                fixed0 = []
                for _ in range(min(st["pend"], maxrefill) if st["pend"] else 0):
                    fixed0 += g.wload_instrs()
                k2 = 0
                while st["pend"] and k2 < maxrefill - 1 and g.can_load():
                    fixed0 += g.wload_instrs(); k2 += 1
                st["pend"] = 0
                fixed1 = []
                if 1 <= idx <= 4:
                    if p + 1 < NP:
                        fixed1.append(g.xfrag_read(st["kstep"] + 1, p + 1, idx - 1))
                    elif prefetch_next:
                        fixed1.append(g.xfrag_read(st["kstep"] + 1, 0, idx - 1))
                if ex_p:
                    fixed1.append(ex_p.pop(0))
                if g.ready_stores and g.nload >= TILES_PER_WAVE:
                    x_ = g.ready_stores.pop(0)
                    if not os.environ.get("X_NOSTORE"):
                        fixed1.append(x_)
                sd = take(nside) if nside else []
                nsd = sum(1 for x in sd if not isinstance(x, Call))
                cap = [max(0, 2 - len(fixed0)), max(0, 2 - len(fixed1)), 2, 1]
                cnt = [0, 0, 0, 0]
                k = 0
                for gi in (2, 1, 0, 3):
                    m_ = min(cap[gi], nsd - k)
                    cnt[gi] += m_
                    k += m_
                gi = 0
                while k < nsd:
                    cnt[gi % 4] += 1; k += 1; gi += 1
                kk = 0
                for j, (rf, csrc) in enumerate(order):
                    m = mfma16(acc(c, rf), ws_, g.xfrag(st["kstep"], rf), csrc)
                    exr = []
                    if j == 0 and (n % 2 == 0) and (n + 1) in g.slot:
                        exr += regs(g.wslot(n + 1), 4)
                        g.retire(("w", n + 1))
                    elif j == 0:
                        g.retire(("w", n))
                    if j == 0 and idx == 0:
                        for r2 in range(4):
                            exr += regs(g.xfrag(st["kstep"], r2), 4)
                    m.extra = frozenset(exr)
                    e(m)
                    if j == 0:
                        e(*fixed0)
                    if j == 1:
                        e(*fixed1)
                    c_ = cnt[j]
                    while kk < len(sd) and (c_ > 0 or isinstance(sd[kk], Call)):
                        if isinstance(sd[kk], Call):
                            sd[kk].fn()
                        else:
                            e(sd[kk]); c_ -= 1
                        kk += 1
                g.release(n, give_back)
                st["pend"] = 1
                st["ntile"] += 1
            emit_list(ex_p)
            if p == side_steps - 1:
                emit_list(side[si[0]:]); si[0] = len(side)
            st["kstep"] += 1

    for c in range(8):
        e(bias_read(0, c))
    extra = {}
    bar = []
    for q in range(1, 7):
        extra[4 * q - 2] = x0_writes(q)
        bar.append(4 * q - 1)
    extra[24] = [bias_read(0, c) for c in range(8, 13)]
    if X_STAMP:
        e(stamp(1))
    phase(PASSES[0], [], 0, barrier_at=tuple(bar), extra=extra,
          give_back=lambda b: not (b in g.borrowed and g.nload >= 208), maxrefill=2,
          stamp_at=({3: 2, 7: 3, 11: 4, 15: 5, 19: 6, 23: 7} if X_STAMP == 3 else None))
    g.free = deque(b for b in g.free if b not in g.borrowed)
    assert all(g.slot[n] not in g.borrowed for n in range(208, g.nload))
    g.pre_load_hook = None
    for l in range(L):
        if l > 0:
            if X_STAMP and X_STAMP != 3:
                e(stamp(1 + 3 * l))
            phase(PASSES[0], E1_side(l - 1), 13, barrier_at=(14,))
        if X_STAMP and X_STAMP != 3:
            e(stamp(2 + 3 * l))
        if X_STAMP == 3 and l == 0:
            e(stamp(8))
        phase(PASSES[1], E0_side(l), NP, prefetch_next=False, first_reads=False,
              maxrefill=2 if l == L - 1 else 1)
        if X_STAMP and X_STAMP != 3:
            e(stamp(3 + 3 * l))
        if l < L - 1:
            e(barrier())
            for P in range(4):
                for rf in range(4):
                    e(ds_write(ldsaddr(P), acc(2 * P, rf), 4, rf * 4096))
            e(barrier())
        else:
            e(*g.ready_stores)
            g.ready_stores = []
            e(*E1_side(l))
    if X_STAMP:
        e(drain_vm())
        e(stamp(10))
        e(stamp(15, real=True))
        e(raw("s_cmp_ge_u32 s2, %d" % (256 if X_STAMP == 2 else (1 if X_STAMP == 4 else 16))))
        e(raw("s_cbranch_scc1 Lmain_end"))
        e(raw("s_load_dwordx2 s[36:37], s[0:1], 32"))
        e(raw("s_waitcnt lgkmcnt(0)"))
        e(raw("s_mov_b32 s40, s36"))
        e(raw("s_and_b32 s41, s37, 0xffff"))
        e(raw("s_mov_b32 s42, %d" % (256 if X_STAMP == 4 else 65536)))
        e(raw("s_mov_b32 s43, 0x00020000"))
        e(raw("s_lshl_b32 s44, s2, 2"))
        e(raw("s_add_u32 s44, s44, %s" % sWAVE))
        e(raw("s_lshl_b32 s44, s44, 6"))
        e(raw("v_mov_b32 v1, 0"))
        for k in range(16):
            e(raw("v_mov_b32 v2, s%d" % (64 + 2 * k)))
            e(raw("buffer_store_dword v2, v1, s[40:43], s44 offen offset:%d" % (4 * k)))
    s = insert_waits(g.s)
    s = pad_hazards(s, verbose=True)
    txt = gen_main_prologue_text() + part1 + gen_main_srd_text() + render(s) + "\nLmain_end:\n  s_endpgm\n"
    return txt


def main():
    out = sys.argv[1] if len(sys.argv) > 1 else "standalone__cross_network_dcn__recsys.s"
    hdr = f"""; DCN-v2 cross network, 3 fused layers, bf16 MFMA (hand-designed schedule, emitted by my own generator script).
; @launch kernel={KPREP} grid=({NP},12,1) block=(832,1,1) lds=0
; @launch kernel={KMAIN} grid=({NWG},1,1) block=(256,1,1) lds={LDS_BYTES}
.amdgcn_target "amdgcn-amd-amdhsa--gfx950"
.text
"""
    txt = hdr + gen_prep() + gen_main()
    txt += '.section .rodata,"a"\n.p2align 6\n'
    txt += DESC.format(name=KPREP, nvgpr=32, nsgpr=48, accoff=32, extra="  .amdhsa_system_sgpr_workgroup_id_y 1\n")
    txt += ".p2align 6\n"
    txt += DESC.format(name=KMAIN, nvgpr=512, nsgpr=100, accoff=256, extra="")
    open(out, "w").write(txt)
    print("wrote", out, len(txt), "bytes")


if __name__ == "__main__":
    main()
```

```python
import sys, os
from collections import deque
from fw import *

X_STAMP = int(os.environ.get("X_STAMP", "0"))
X_DEEP0 = int(os.environ.get("X_DEEP0", "1"))
X_GROW2 = int(os.environ.get("X_GROW2", "1"))
X_XPOL = os.environ.get("X_XPOL", "nt")
X_SPOL = os.environ.get("X_SPOL", "")
SPACE = int(os.environ.get("SPACE", "3"))
NW0 = int(os.environ.get("NW0", "28"))
XSTEP = int(os.environ.get("XSTEP", "0"))
XLEAD = int(os.environ.get("XLEAD", "300"))

NB, D, L = 16384, 832, 3
ROWS = 64
NWG = NB // ROWS
ROWB = D * 2
NP = 26
NT = 13
TILES_PER_LAYER = NP * NT
TILES_PER_WAVE = L * TILES_PER_LAYER
WP_BYTES = 4 * TILES_PER_WAVE * 1024
XT_BYTES = 7 * 16384
BIAS_BASE = XT_BYTES
LDS_BYTES = XT_BYTES + 10240
KMAIN = "standalone__cross_network_dcn__recsys_kernel"
KPREP = "dcn_prep_kernel"


def kb_of_p(p):
    if p < 16:
        return 6 * (p // 4) + (p % 4)
    p2 = p - 16
    if p2 < 8:
        return 6 * (p2 // 2) + 4 + (p2 % 2)
    return 24 + (p2 - 8)


def feat(w, c, i):
    if c < 12:
        return 192 * w + 32 * (c // 2) + 8 * (i // 4) + 4 * (c % 2) + (i % 4)
    return 768 + 16 * w + i


PASSES = [list(range(8)), list(range(8, 13))]


def stream_index(p, c):
    base = 0
    for tl in PASSES:
        if c in tl:
            return base + p * len(tl) + tl.index(c)
        base += NP * len(tl)
    raise ValueError


def gen_prep():
    return f"""
.globl {KPREP}
.p2align 8
.type {KPREP},@function
{KPREP}:
  s_cmp_ge_u32 s2, {NP}
  s_cbranch_scc1 Lprep_end
{"  s_memrealtime s[48:49]" if X_STAMP == 5 else ""}
  s_load_dwordx2 s[4:5], s[0:1], 8
  s_load_dwordx2 s[6:7], s[0:1], 40      ; d_ws
  v_lshrrev_b32 v1, 6, v0
  v_and_b32 v2, 63, v0                   ; lane
  v_and_b32 v3, 15, v2                   ; i
  v_lshrrev_b32 v4, 4, v2                ; g
  s_nop 0
  v_readfirstlane_b32 s9, v1             ; c
  s_lshr_b32 s10, s3, 2                  ; l
  s_and_b32 s11, s3, 3                   ; w
  ; kb(p)
  s_lshr_b32 s12, s2, 2
  s_mul_i32 s12, s12, 6
  s_and_b32 s13, s2, 3
  s_add_u32 s12, s12, s13                ; p<16
  s_sub_u32 s13, s2, 16                  ; p2
  s_lshr_b32 s14, s13, 1
  s_mul_i32 s14, s14, 6
  s_and_b32 s15, s13, 1
  s_add_u32 s14, s14, s15
  s_add_u32 s14, s14, 4                  ; 16<=p<24
  s_cmp_lt_u32 s2, 16
  s_cselect_b32 s12, s12, s14
  s_cmp_lt_u32 s2, 24
  s_cselect_b32 s12, s12, s2             ; p>=24 : kb = p
  ; featbase = c<12 ? 192w + 32(c>>1) + 4(c&1) : 768 + 16w
  s_mul_i32 s13, s11, 192
  s_lshr_b32 s14, s9, 1
  s_lshl_b32 s14, s14, 5
  s_add_u32 s13, s13, s14
  s_and_b32 s14, s9, 1
  s_lshl_b32 s14, s14, 2
  s_add_u32 s13, s13, s14
  s_lshl_b32 s14, s11, 4
  s_add_u32 s14, s14, 768
  s_cmp_lt_u32 s9, 12
  s_cselect_b32 s13, s13, s14            ; featbase
  v_lshrrev_b32 v5, 2, v3
  v_lshlrev_b32 v5, 3, v5
  v_and_b32 v6, 3, v3
  v_add_u32 v5, v5, v6                   ; 8*(i>>2) + (i&3)
  v_cmp_gt_u32 vcc, 12, v1
  s_nop 1
  v_cndmask_b32 v5, v3, v5, vcc          ; c<12 ? .. : i
  v_lshlrev_b32 v5, 1, v5                ; *2 bytes
  v_mul_u32_u24 v6, 13312, v4            ; 8*g*1664
  v_add_u32 v5, v5, v6                   ; voffset
  v_lshlrev_b32 v7, 4, v2                ; lane*16
  s_waitcnt lgkmcnt(0)
  s_mov_b32 s24, s4
  s_and_b32 s25, s5, 0xffff
  s_mov_b32 s26, {L * D * ROWB}
  s_mov_b32 s27, 0x00020000
  s_mov_b32 s28, s6
  s_and_b32 s29, s7, 0xffff
  s_mov_b32 s30, {WP_BYTES}
  s_mov_b32 s31, 0x00020000
  s_mul_i32 s14, s10, {D * ROWB}
  s_mul_i32 s15, s12, {32 * ROWB}
  s_add_u32 s14, s14, s15
  s_lshl_b32 s15, s13, 1
  s_add_u32 s32, s14, s15
  s_add_u32 s33, s32, {ROWB}
  s_add_u32 s34, s33, {ROWB}
  s_add_u32 s35, s34, {ROWB}
  s_add_u32 s36, s35, {ROWB}
  s_add_u32 s37, s36, {ROWB}
  s_add_u32 s38, s37, {ROWB}
  s_add_u32 s39, s38, {ROWB}
  buffer_load_ushort v10, v5, s[24:27], s32 offen
  buffer_load_ushort v11, v5, s[24:27], s33 offen
  buffer_load_ushort v12, v5, s[24:27], s34 offen
  buffer_load_ushort v13, v5, s[24:27], s35 offen
  buffer_load_ushort v14, v5, s[24:27], s36 offen
  buffer_load_ushort v15, v5, s[24:27], s37 offen
  buffer_load_ushort v16, v5, s[24:27], s38 offen
  buffer_load_ushort v17, v5, s[24:27], s39 offen
  s_lshl_b32 s20, s2, 3
  s_add_u32 s20, s20, s9
  s_mul_i32 s21, s2, 5
  s_add_u32 s21, s21, s9
  s_add_u32 s21, s21, 200
  s_cmp_lt_u32 s9, 8
  s_cselect_b32 s20, s20, s21
  s_mul_i32 s21, s11, {TILES_PER_WAVE}
  s_add_u32 s20, s20, s21
  s_mul_i32 s21, s10, {TILES_PER_LAYER}
  s_add_u32 s20, s20, s21
  s_lshl_b32 s20, s20, 10
  s_waitcnt vmcnt(0)
  v_lshl_or_b32 v20, v11, 16, v10
  v_lshl_or_b32 v21, v13, 16, v12
  v_lshl_or_b32 v22, v15, 16, v14
  v_lshl_or_b32 v23, v17, 16, v16
  buffer_store_dwordx4 v[20:23], v7, s[28:31], s20 offen
{PREP_STAMP if X_STAMP == 5 else ""}
Lprep_end:
  s_endpgm
"""


PREP_STAMP = """
  s_waitcnt vmcnt(0)
  s_memrealtime s[50:51]
  s_load_dwordx2 s[36:37], s[0:1], 32
  s_waitcnt lgkmcnt(0)
  s_cmp_lg_u32 s9, 0
  s_cbranch_scc1 Lprep_end
  s_mov_b32 s40, s36
  s_and_b32 s41, s37, 0xffff
  s_mov_b32 s42, 65536
  s_mov_b32 s43, 0x00020000
  s_mul_i32 s44, s3, 26
  s_add_u32 s44, s44, s2
  s_lshl_b32 s44, s44, 3
  v_mov_b32 v1, 0
  v_mov_b32 v2, s48
  v_mov_b32 v3, s50
  buffer_store_dwordx2 v[2:3], v1, s[40:43], s44 offen
"""

DESC = """
.amdhsa_kernel {name}
  .amdhsa_next_free_vgpr {nvgpr}
  .amdhsa_next_free_sgpr {nsgpr}
  .amdhsa_accum_offset {accoff}
  .amdhsa_group_segment_fixed_size 0
  .amdhsa_kernarg_size 48
  .amdhsa_user_sgpr_count 2
  .amdhsa_user_sgpr_kernarg_segment_ptr 1
  .amdhsa_system_sgpr_workgroup_id_x 1
{extra}.end_amdhsa_kernel
"""

ACC = 0


def acc(c, rf):
    return ACC + (c * 4 + rf) * 4


def bias_reg(c):
    if c < 8:
        c1 = c | 1
        return acc(c1, 1) if (c & 1) == 0 else acc(c1, 0)
    return acc(c, 0)


VM = 208
vW16 = VM + 0
vXA = VM + 1
vEA = VM + 9
vEB = VM + 13
vES = VM + 15
vOG = VM + 16
vOS = VM + 17
vBA = VM + 18
vBS = VM + 19
vT = VM + 20
RING = 0
R = 26
XF = 104
X0C = 136

sX0 = "s[4:7]"
sWP = "s[8:11]"
sOUT = "s[12:15]"
sBS = "s[16:19]"
sWOFF = "s20"
sWAVE = "s21"
sRF = ["0", "s24", "s25", "s26"]
sMASK = "s27"


def x0reg(P, rf, d):
    if P < 6:
        return A(X0C + (P * 4 + rf) * 4 + d)
    return A(X0C + 96 + rf * 2 + d)


class Call:
    def __init__(self, fn):
        self.fn = fn


class Gen:
    def __init__(self):
        self.s = []
        self.nload = 0
        self.free = deque(A(RING + 4 * k) for k in range(R))
        self.borrowed = set()
        self.slot = {}
        self.vmq = []
        self.pre_load_hook = None
        self.borrow_limit = 208
        self.ready_stores = []

    def e(self, *ins):
        self.s.extend(ins)

    def vm(self, tag):
        self.vmq.append(tag)
        assert len(self.vmq) <= 63, "too many outstanding VMEM ops"

    def retire(self, tag):
        if tag in self.vmq:
            k = self.vmq.index(tag)
            self.vmq = self.vmq[k + 1:]

    def can_load(self):
        n = self.nload
        if n >= TILES_PER_WAVE:
            return False
        while self.free and self.free[0] in self.borrowed and n >= self.borrow_limit:
            self.free.popleft()
        if not self.free:
            return False
        need = 1 + (4 if (self.pre_load_hook and self.hook_test(n)) else 0)
        return len(self.vmq) + need <= 61

    def wload_instrs(self):
        if not self.can_load():
            return []
        n = self.nload
        o = []
        if self.pre_load_hook:
            o += self.pre_load_hook(n)
        if n % 4 == 0 and n > 0:
            o.append(salu("s_add_u32 %s, %s, 4096" % (sWOFF, sWOFF)))
        base = self.free.popleft()
        self.slot[n] = base
        o.append(buf_load(base, 4, vW16, sWP, sWOFF, (n % 4) * 1024))
        self.vm(("w", n))
        self.nload += 1
        return o

    def release(self, n, give_back=True):
        base = self.slot[n]
        if give_back(base) if callable(give_back) else give_back:
            self.free.append(base)

    def wslot(self, n):
        return self.slot[n]

    def xfrag_read(self, kstep, p, rf):
        q, m = p // 4, p % 4
        hi = 1 if q >= 4 else 0
        return ds_read(A(XF + 16 * (kstep & 1) + 4 * rf), 4, vXA + m + 4 * hi, (q % 4) * 16384 + rf * 4096)

    def xfrag(self, kstep, rf):
        return A(XF + 16 * (kstep & 1) + 4 * rf)


def gen_main_prologue_text():
    return f"""
.globl {KMAIN}
.p2align 8
.type {KMAIN},@function
{KMAIN}:
  s_cmp_ge_u32 s2, {NWG}
  s_cbranch_scc1 Lmain_end
  s_load_dwordx2 s[28:29], s[0:1], 0       ; x0
  s_load_dwordx2 s[30:31], s[0:1], 16      ; bs
  s_load_dwordx2 s[32:33], s[0:1], 24      ; out
  s_load_dwordx2 s[34:35], s[0:1], 40      ; d_ws
  v_lshrrev_b32 v1, 6, v0
  v_and_b32 v2, 63, v0                     ; lane
  v_and_b32 v3, 15, v2                     ; i
  v_lshrrev_b32 v4, 4, v2                  ; g
  s_nop 0
  v_readfirstlane_b32 {sWAVE}, v1
  s_mov_b32 s24, {16 * ROWB}
  s_mov_b32 s25, {32 * ROWB}
  s_mov_b32 s26, {48 * ROWB}
  s_mov_b32 {sMASK}, 0xffff0000
  s_mov_b32 s22, 4096
  s_mul_i32 s36, s2, {ROWS * ROWB}
  s_mul_i32 {sWOFF}, {sWAVE}, {TILES_PER_WAVE * 1024}
"""


def gen_main_srd_text():
    return f"""
  s_waitcnt lgkmcnt(0)
  s_add_u32 s4, s28, s36
  s_addc_u32 s5, s29, 0
  s_and_b32 s5, s5, 0xffff
  s_mov_b32 s6, {ROWS * ROWB}
  s_mov_b32 s7, 0x00020000
  s_mov_b32 s8, s34
  s_and_b32 s9, s35, 0xffff
  s_mov_b32 s10, {WP_BYTES}
  s_mov_b32 s11, 0x00020000
  s_add_u32 s12, s32, s36
  s_addc_u32 s13, s33, 0
  s_and_b32 s13, s13, 0xffff
  s_mov_b32 s14, {ROWS * ROWB}
  s_mov_b32 s15, 0x00020000
  s_mov_b32 s16, s30
  s_and_b32 s17, s31, 0xffff
  s_mov_b32 s18, {L * D * 2}
  s_mov_b32 s19, 0x00020000
"""


def gen_main():
    g0 = Gen()
    e = g0.e
    vtid, vwv, vlane, vi, vg = 0, 1, 2, 3, 4
    t0, t1, t2, t3 = vT, vT + 1, vT + 2, vT + 3
    if X_STAMP:
        e(stamp(0))
        e(stamp(14, real=True))
    e(valu("v_lshlrev_b32", vW16, "4", vlane))
    e(valu("v_xor_b32", t0, vg, vi))
    e(valu("v_lshlrev_b32", t0, "4", t0))
    e(valu("v_lshl_add_u32", t0, vi, "8", t0))
    for m in range(4):
        e(valu("v_xor_b32", vXA + m, str(m << 6), t0))
        e(valu("v_add_u32", vXA + 4 + m, "0x10000", vXA + m))
        e(valu("v_lshl_add_u32", vEA + m, vwv, "14", vXA + m))
    e(valu("v_and_b32", t2, "1", vwv))
    e(valu("v_lshlrev_b32", t2, "7", t2))
    e(valu("v_xor_b32", t2, t2, t0))
    e(valu("v_lshrrev_b32", t3, "1", vwv))
    e(valu("v_add_u32", t3, "4", t3))
    e(valu("v_lshl_add_u32", vEB + 0, t3, "14", t2))
    e(valu("v_xor_b32", vEB + 1, "64", vEB + 0))
    e(valu("v_lshrrev_b32", t2, "1", vg))
    e(valu("v_lshl_add_u32", t2, vwv, "1", t2))
    e(valu("v_xor_b32", t2, t2, vi))
    e(valu("v_lshlrev_b32", t2, "4", t2))
    e(valu("v_lshl_add_u32", t2, vi, "8", t2))
    e(valu("v_and_b32", t3, "1", vg))
    e(valu("v_lshl_add_u32", t2, t3, "3", t2))
    e(valu("v_add_u32", vES, str(6 * 16384), t2))
    e(valu("v_mul_u32_u24", t2, str(ROWB), vi))
    e(valu("v_lshl_add_u32", t3, vg, "4", t2))
    e(valu("v_mul_u32_u24", vOG, "384", vwv))
    e(valu("v_add_u32", vOG, vOG, t3))
    e(valu("v_lshl_add_u32", t3, vg, "3", t2))
    e(valu("v_lshl_add_u32", t3, vwv, "5", t3))
    e(valu("v_add_u32", vOS, "1536", t3))
    e(valu("v_mul_u32_u24", t2, "768", vwv))
    e(valu("v_lshl_add_u32", t2, vg, "5", t2))
    e(valu("v_add_u32", vBA, str(BIAS_BASE), t2))
    e(valu("v_lshlrev_b32", t2, "6", vwv))
    e(valu("v_lshl_add_u32", t2, vg, "4", t2))
    e(valu("v_add_u32", vBS, str(BIAS_BASE + 768 * 4), t2))
    pr, pc = vT + 4, vT + 5
    pVA, pVB, pVC, pVL, pVLh, pBo, pBl = vT + 6, vT + 7, vT + 8, vT + 9, vT + 10, vT + 11, vT + 12
    e(valu("v_lshrrev_b32", pr, "4", vtid))
    e(valu("v_and_b32", pc, "15", vtid))
    e(valu("v_mul_u32_u24", t2, str(ROWB), pr))
    e(valu("v_lshl_add_u32", pVA, pc, "4", t2))
    e(valu("v_add_u32", pVB, "256", pVA))
    e(valu("v_add_u32", t3, "512", pVA))
    e(raw("v_cmp_gt_u32 vcc, 8, %s" % rname(pc), "raw", reads=[pc]))
    e(raw("s_nop 1"))
    e(raw("v_cndmask_b32 %s, %s, %s, vcc" % (rname(pVB), rname(t3), rname(pVB)), "valu", reads=[t3, pVB], writes=[pVB]))
    e(valu("v_add_u32", pVC, "1536", pVA))
    e(valu("v_xor_b32", t2, pc, pr))
    e(valu("v_lshlrev_b32", t2, "4", t2))
    e(valu("v_lshl_add_u32", pVL, pr, "8", t2))
    e(valu("v_add_u32", pVLh, "0x10000", pVL))
    e(valu("v_lshlrev_b32", pBo, "2", vtid))
    e(valu("v_lshlrev_b32", pBl, "3", vtid))
    e(valu("v_add_u32", pBl, str(BIAS_BASE), pBl))
    part1 = render(g0.s)

    g = Gen()
    e = g.e
    st = {"kstep": 0, "ntile": 0, "pend": 0}
    STG7 = [A(240)] + [acc(8, 0) + 16 * k for k in range(5)] + [A(X0C + 88)]
    bstage = vT + 13

    def x0_load(q, it):
        if q < 4:
            va, imm = pVA, 384 * q
        elif q < 6:
            va, imm = pVB, 768 * (q - 4)
        else:
            va, imm = pVC, 0
        ins = buf_load(STG7[q] + 4 * it, 4, va, sX0, sRF[it], imm)
        if X_XPOL:
            ins.text += " " + X_XPOL
        g.vm(("x", q, it))
        return ins

    def x0_loads(q):
        return [x0_load(q, it) for it in range(4)]

    def x0_writes(q):
        o = []
        for it in range(4):
            if q < 4:
                o.append(ds_write(pVL, STG7[q] + 4 * it, 4, q * 16384 + it * 4096))
            else:
                o.append(ds_write(pVLh, STG7[q] + 4 * it, 4, (q - 4) * 16384 + it * 4096))
        return o

    def bias_read(l, c):
        if c < 12:
            return ds_read(bias_reg(c), 4, vBA, l * 3328 + 128 * (c // 2) + 16 * (c % 2))
        return ds_read(bias_reg(c), 4, vBS, l * 3328)

    for kk in range(5):
        if kk < 4:
            e(buf_load(bstage + kk, 1, pBo, sBS, "0", 1024 * kk))
        else:
            e(buf_load(bstage + kk, 1, pBo, sBS, "s22", 0))
        g.vm(("b", kk))
    if X_DEEP0:
        for k in range(22):
            b = A(X0C + 4 * k)
            g.free.append(b)
            g.borrowed.add(b)
        e(*x0_loads(0))
        for _ in range(NW0):
            e(*g.wload_instrs())
        xsched = {}
        for q in range(1, 7):
            for it in range(4):
                n_ = 32 * q - XLEAD + XSTEP * it
                if n_ < NW0:
                    e(x0_load(q, it))
                else:
                    xsched.setdefault(n_, []).append((q, it))

        def hook(n):
            return [x0_load(q, it) for (q, it) in xsched.get(n, [])]
        g.pre_load_hook = hook
        g.hook_test = lambda n: n in xsched
        while g.can_load() and g.nload < 64:
            e(*g.wload_instrs())
        e(*x0_writes(0))
        g.retire(("x", 0, 3))
    else:
        xs = []
        for q in range(7):
            pass
        raise NotImplementedError
    for kk in range(5):
        e(valu("v_lshlrev_b32", t0, "16", bstage + kk))
        e(valu("v_and_b32", t1, sMASK, bstage + kk))
        e(ds_write(pBl, t0, 2, 2048 * kk))
    e(barrier())

    XS = [vT + 0, vT + 4]
    TP = [vT + 8, vT + 10, vT + 12, vT + 14]
    U = vT + 16

    def ldsaddr(P):
        return (vEA + P) if P < 4 else (vEB + P - 4)

    def item_valu(l, P, rf, X, dst):
        o = []
        nd = 4 if P < 6 else 2
        for d in range(nd):
            if P < 6:
                ap = acc(2 * P + d // 2, rf) + 2 * (d % 2)
            else:
                ap = acc(12, rf) + 2 * d
            T = TP[d & 1]
            o.append(valu("v_lshlrev_b32", T, "16", X + d))
            o.append(valu("v_and_b32", T + 1, sMASK, X + d))
            if l == 0:
                o.append(valu("v_accvgpr_write_b32", x0reg(P, rf, d), X + d))
                o.append(valu("v_fma_f32", T, T, ap, T))
                o.append(valu("v_fma_f32", T + 1, T + 1, ap + 1, T + 1))
            else:
                U2 = TP[2 + (d & 1)]
                o.append(valu("v_accvgpr_read_b32", U, x0reg(P, rf, d)))
                o.append(valu("v_lshlrev_b32", U2, "16", U))
                o.append(valu("v_and_b32", U2 + 1, sMASK, U))
                o.append(valu("v_fma_f32", T, U2, ap, T))
                o.append(valu("v_fma_f32", T + 1, U2 + 1, ap + 1, T + 1))
            o.append(valu("v_cvt_pk_bf16_f32", dst(d), T, T + 1))
        return o

    def store_instr(X, P, rf):
        g_tag = ("s", P, rf)
        if P < 6:
            ins = buf_store(X, 4, vOG, sOUT, sRF[rf], 64 * P)
        else:
            ins = buf_store(X, 2, vOS, sOUT, sRF[rf], 0)
        if X_SPOL:
            ins.text += " " + X_SPOL
        return ins

    def E0_side(l):
        o = []
        items = [(P, rf) for P in range(4) for rf in range(4)]
        o.append(ds_read(XS[0], 4, ldsaddr(0), 0))
        for idx, (P, rf) in enumerate(items):
            if idx + 1 < len(items):
                P2, r2 = items[idx + 1]
                o.append(ds_read(XS[(idx + 1) & 1], 4, ldsaddr(P2), r2 * 4096))
            X = XS[idx & 1]
            c0 = 2 * P
            o += item_valu(l, P, rf, X, lambda d: acc(c0, rf) + d)
            if l == L - 1:
                o.append(Call(lambda P=P, rf=rf, c0=c0: g.ready_stores.append(store_instr(acc(c0, rf), P, rf))))
                if X_GROW2:
                    o.append(Call(lambda P=P, rf=rf: g.free.append(x0reg(P, rf, 0))))
                if rf == 3 and X_GROW2:
                    def grow(c0=c0):
                        for r4 in range(4):
                            g.free.append(acc(c0 + 1, r4))
                    o.append(Call(grow))
            if rf == 3 and l < L - 1:
                o.append(bias_read(l + 1, c0))
                o.append(bias_read(l + 1, c0 + 1))
        return o

    def E1_side(l):
        o = []
        items = [(P, rf) for P in (4, 5) for rf in range(4)] + [(6, rf) for rf in range(4)]

        def rd(idx):
            P, rf = items[idx]
            if P < 6:
                return ds_read(XS[idx & 1], 4, ldsaddr(P), rf * 4096)
            return ds_read(XS[idx & 1], 2, vES, rf * 4096)
        o.append(rd(0))
        for idx, (P, rf) in enumerate(items):
            if idx + 1 < len(items):
                o.append(rd(idx + 1))
            X = XS[idx & 1]
            o += item_valu(l, P, rf, X, lambda d: X + d)
            if l < L - 1:
                if P < 6:
                    o.append(ds_write(ldsaddr(P), X, 4, rf * 4096))
                else:
                    o.append(ds_write(vES, X, 2, rf * 4096))
            else:
                o.append(store_instr(X, P, rf))
        if l < L - 1:
            for c in range(8, 13):
                o.append(bias_read(l + 1, c))
        return o

    def phase(tiles, side, side_steps, barrier_at=(), extra=None, prefetch_next=True, first_reads=True,
              give_back=True, maxrefill=1, stamp_at=None):
        nt = len(tiles)
        extra = extra or {}
        nreal = sum(1 for x in side if not isinstance(x, Call))
        ntiles_side = nt * side_steps
        rate = (nreal / float(ntiles_side)) if ntiles_side else 0.0
        quota = 0.0
        si = [0]

        def take(n):
            out = []
            cnt_ = 0
            while si[0] < len(side) and (cnt_ < n or isinstance(side[si[0]], Call)):
                x = side[si[0]]
                si[0] += 1
                out.append(x)
                if not isinstance(x, Call):
                    cnt_ += 1
            return out

        def emit_list(lst):
            for x in lst:
                if isinstance(x, Call):
                    x.fn()
                else:
                    e(x)

        if first_reads:
            for rf in range(4):
                e(g.xfrag_read(st["kstep"], 0, rf))
        for p in range(NP):
            if p in barrier_at:
                if stamp_at and p in stamp_at:
                    e(stamp(stamp_at[p]))
                e(barrier())
            ex_p = list(extra.get(p, []))
            for idx, c in enumerate(tiles):
                n = st["ntile"]
                ws_ = g.wslot(n)
                if p == 0:
                    order = [(rf, bias_reg(c)) for rf in (3, 2, 1, 0)]
                else:
                    order = [(rf, acc(c, rf)) for rf in range(4)]
                nside = 0
                if p < side_steps:
                    quota += rate
                    nside = int(quota + 1e-9)
                    quota -= nside
                fixed0 = []
                for _ in range(min(st["pend"], maxrefill) if st["pend"] else 0):
                    fixed0 += g.wload_instrs()
                k2 = 0
                while st["pend"] and k2 < maxrefill - 1 and g.can_load():
                    fixed0 += g.wload_instrs(); k2 += 1
                st["pend"] = 0
                fixed1 = []
                if 1 <= idx <= 4:
                    if p + 1 < NP:
                        fixed1.append(g.xfrag_read(st["kstep"] + 1, p + 1, idx - 1))
                    elif prefetch_next:
                        fixed1.append(g.xfrag_read(st["kstep"] + 1, 0, idx - 1))
                if ex_p:
                    fixed1.append(ex_p.pop(0))
                if g.ready_stores and g.nload >= TILES_PER_WAVE and (st["ntile"] % SPACE == 0):
                    x_ = g.ready_stores.pop(0)
                    if not os.environ.get("X_NOSTORE"):
                        fixed1.append(x_)
                sd = take(nside) if nside else []
                nsd = sum(1 for x in sd if not isinstance(x, Call))
                cap = [max(0, 2 - len(fixed0)), max(0, 2 - len(fixed1)), 2, 1]
                cnt = [0, 0, 0, 0]
                k = 0
                for gi in (2, 1, 0, 3):
                    m_ = min(cap[gi], nsd - k)
                    cnt[gi] += m_
                    k += m_
                gi = 0
                while k < nsd:
                    cnt[gi % 4] += 1; k += 1; gi += 1
                kk = 0
                for j, (rf, csrc) in enumerate(order):
                    m = mfma16(acc(c, rf), ws_, g.xfrag(st["kstep"], rf), csrc)
                    exr = []
                    if j == 0 and (n % 2 == 0) and (n + 1) in g.slot:
                        exr += regs(g.wslot(n + 1), 4)
                        g.retire(("w", n + 1))
                    elif j == 0:
                        g.retire(("w", n))
                    if j == 0 and idx == 0:
                        for r2 in range(4):
                            exr += regs(g.xfrag(st["kstep"], r2), 4)
                    m.extra = frozenset(exr)
                    e(m)
                    if j == 0:
                        e(*fixed0)
                    if j == 1:
                        e(*fixed1)
                    c_ = cnt[j]
                    while kk < len(sd) and (c_ > 0 or isinstance(sd[kk], Call)):
                        if isinstance(sd[kk], Call):
                            sd[kk].fn()
                        else:
                            e(sd[kk]); c_ -= 1
                        kk += 1
                g.release(n, give_back)
                st["pend"] = 1
                st["ntile"] += 1
            emit_list(ex_p)
            if p == side_steps - 1:
                emit_list(side[si[0]:]); si[0] = len(side)
            st["kstep"] += 1

    for c in range(8):
        e(bias_read(0, c))
    extra = {}
    bar = []
    for q in range(1, 7):
        extra[4 * q - 2] = x0_writes(q)
        bar.append(4 * q - 1)
    extra[24] = [bias_read(0, c) for c in range(8, 13)]
    if X_STAMP:
        e(stamp(1))
    phase(PASSES[0], [], 0, barrier_at=tuple(bar), extra=extra,
          give_back=lambda b: not (b in g.borrowed and g.nload >= 208), maxrefill=2,
          stamp_at=({3: 2, 7: 3, 11: 4, 15: 5, 19: 6, 23: 7} if X_STAMP == 3 else None))
    g.free = deque(b for b in g.free if b not in g.borrowed)
    assert all(g.slot[n] not in g.borrowed for n in range(208, g.nload))
    g.pre_load_hook = None
    for l in range(L):
        if l > 0:
            if X_STAMP and X_STAMP != 3:
                e(stamp(1 + 3 * l))
            phase(PASSES[0], E1_side(l - 1), 13, barrier_at=(14,))
        if X_STAMP and X_STAMP != 3:
            e(stamp(2 + 3 * l))
        if X_STAMP == 3 and l == 0:
            e(stamp(8))
        phase(PASSES[1], E0_side(l), NP, prefetch_next=False, first_reads=False,
              maxrefill=3 if l == L - 1 else 1)
        if X_STAMP and X_STAMP != 3:
            e(stamp(3 + 3 * l))
        if l < L - 1:
            e(barrier())
            for P in range(4):
                for rf in range(4):
                    e(ds_write(ldsaddr(P), acc(2 * P, rf), 4, rf * 4096))
            e(barrier())
        else:
            e(*g.ready_stores)
            g.ready_stores = []
            e(*E1_side(l))
    if X_STAMP:
        e(drain_vm())
        e(stamp(10))
        e(stamp(15, real=True))
        e(raw("s_cmp_ge_u32 s2, %d" % (256 if X_STAMP in (2, 5) else (1 if X_STAMP == 4 else 16))))
        e(raw("s_cbranch_scc1 Lmain_end"))
        e(raw("s_load_dwordx2 s[36:37], s[0:1], 32"))
        e(raw("s_waitcnt lgkmcnt(0)"))
        e(raw("s_mov_b32 s40, s36"))
        e(raw("s_and_b32 s41, s37, 0xffff"))
        e(raw("s_mov_b32 s42, %d" % (256 if X_STAMP == 4 else 65536)))
        e(raw("s_mov_b32 s43, 0x00020000"))
        e(raw("s_lshl_b32 s44, s2, 2"))
        e(raw("s_add_u32 s44, s44, %s" % sWAVE))
        e(raw("s_lshl_b32 s44, s44, 6"))
        e(raw("v_mov_b32 v1, 0"))
        for k in range(16):
            e(raw("v_mov_b32 v2, s%d" % (64 + 2 * k)))
            e(raw("buffer_store_dword v2, v1, s[40:43], s44 offen offset:%d" % (4 * k)))
    s = insert_waits(g.s)
    s = pad_hazards(s, verbose=True)
    txt = gen_main_prologue_text() + part1 + gen_main_srd_text() + render(s) + "\nLmain_end:\n  s_endpgm\n"
    return txt


def main():
    out = sys.argv[1] if len(sys.argv) > 1 else "standalone__cross_network_dcn__recsys.s"
    hdr = f"""; DCN-v2 cross network, 3 fused layers, bf16 MFMA (hand-designed schedule, emitted by my own generator script).
; @launch kernel={KPREP} grid=({NP},12,1) block=(832,1,1) lds=0
; @launch kernel={KMAIN} grid=({NWG},1,1) block=(256,1,1) lds={LDS_BYTES}
.amdgcn_target "amdgcn-amd-amdhsa--gfx950"
.text
"""
    txt = hdr + gen_prep() + gen_main()
    txt += '.section .rodata,"a"\n.p2align 6\n'
    txt += DESC.format(name=KPREP, nvgpr=32, nsgpr=56, accoff=32, extra="  .amdhsa_system_sgpr_workgroup_id_y 1\n")
    txt += ".p2align 6\n"
    txt += DESC.format(name=KMAIN, nvgpr=512, nsgpr=100, accoff=256, extra="")
    open(out, "w").write(txt)
    print("wrote", out, len(txt), "bytes")


if __name__ == "__main__":
    main()
```

```python
import sys, os
from collections import deque
from fw import *

X_STAMP = int(os.environ.get("X_STAMP", "0"))
X_DEEP0 = int(os.environ.get("X_DEEP0", "1"))
X_GROW2 = int(os.environ.get("X_GROW2", "1"))
X_XPOL = os.environ.get("X_XPOL", "nt")
X_SPOL = os.environ.get("X_SPOL", "")
SPACE = int(os.environ.get("SPACE", "3"))
NW0 = int(os.environ.get("NW0", "28"))
XSTEP = int(os.environ.get("XSTEP", "0"))
XLEAD = int(os.environ.get("XLEAD", "300"))

NB, D, L = 16384, 832, 3
ROWS = 64
NWG = NB // ROWS
ROWB = D * 2
NP = 26
NT = 13
TILES_PER_LAYER = NP * NT
TILES_PER_WAVE = L * TILES_PER_LAYER
WP_BYTES = 4 * TILES_PER_WAVE * 1024
XT_BYTES = 7 * 16384
BIAS_BASE = XT_BYTES
LDS_BYTES = XT_BYTES + 10240
KMAIN = "standalone__cross_network_dcn__recsys_kernel"
KPREP = "dcn_prep_kernel"


def kb_of_p(p):
    if p < 16:
        return 6 * (p // 4) + (p % 4)
    p2 = p - 16
    if p2 < 8:
        return 6 * (p2 // 2) + 4 + (p2 % 2)
    return 24 + (p2 - 8)


def feat(w, c, i):
    if c < 12:
        return 192 * w + 32 * (c // 2) + 8 * (i // 4) + 4 * (c % 2) + (i % 4)
    return 768 + 16 * w + i


PASSES = [list(range(8)), list(range(8, 13))]


def stream_index(p, c):
    base = 0
    for tl in PASSES:
        if c in tl:
            return base + p * len(tl) + tl.index(c)
        base += NP * len(tl)
    raise ValueError


def gen_prep():
    return f"""
.globl {KPREP}
.p2align 8
.type {KPREP},@function
{KPREP}:
  s_cmp_ge_u32 s2, {NP}
  s_cbranch_scc1 Lprep_end
{"  s_memrealtime s[48:49]" if X_STAMP == 5 else ""}
  s_load_dwordx2 s[4:5], s[0:1], 8
  s_load_dwordx2 s[6:7], s[0:1], 40      ; d_ws
  v_lshrrev_b32 v1, 6, v0
  v_and_b32 v2, 63, v0                   ; lane
  v_and_b32 v3, 15, v2                   ; i
  v_lshrrev_b32 v4, 4, v2                ; g
  s_nop 0
  v_readfirstlane_b32 s9, v1             ; c
  s_lshr_b32 s10, s3, 2                  ; l
  s_and_b32 s11, s3, 3                   ; w
  ; kb(p)
  s_lshr_b32 s12, s2, 2
  s_mul_i32 s12, s12, 6
  s_and_b32 s13, s2, 3
  s_add_u32 s12, s12, s13                ; p<16
  s_sub_u32 s13, s2, 16                  ; p2
  s_lshr_b32 s14, s13, 1
  s_mul_i32 s14, s14, 6
  s_and_b32 s15, s13, 1
  s_add_u32 s14, s14, s15
  s_add_u32 s14, s14, 4                  ; 16<=p<24
  s_cmp_lt_u32 s2, 16
  s_cselect_b32 s12, s12, s14
  s_cmp_lt_u32 s2, 24
  s_cselect_b32 s12, s12, s2             ; p>=24 : kb = p
  ; featbase = c<12 ? 192w + 32(c>>1) + 4(c&1) : 768 + 16w
  s_mul_i32 s13, s11, 192
  s_lshr_b32 s14, s9, 1
  s_lshl_b32 s14, s14, 5
  s_add_u32 s13, s13, s14
  s_and_b32 s14, s9, 1
  s_lshl_b32 s14, s14, 2
  s_add_u32 s13, s13, s14
  s_lshl_b32 s14, s11, 4
  s_add_u32 s14, s14, 768
  s_cmp_lt_u32 s9, 12
  s_cselect_b32 s13, s13, s14            ; featbase
  v_lshrrev_b32 v5, 2, v3
  v_lshlrev_b32 v5, 3, v5
  v_and_b32 v6, 3, v3
  v_add_u32 v5, v5, v6                   ; 8*(i>>2) + (i&3)
  v_cmp_gt_u32 vcc, 12, v1
  s_nop 1
  v_cndmask_b32 v5, v3, v5, vcc          ; c<12 ? .. : i
  v_lshlrev_b32 v5, 1, v5                ; *2 bytes
  v_mul_u32_u24 v6, 13312, v4            ; 8*g*1664
  v_add_u32 v5, v5, v6                   ; voffset
  v_lshlrev_b32 v7, 4, v2                ; lane*16
  s_waitcnt lgkmcnt(0)
  s_mov_b32 s24, s4
  s_and_b32 s25, s5, 0xffff
  s_mov_b32 s26, {L * D * ROWB}
  s_mov_b32 s27, 0x00020000
  s_mov_b32 s28, s6
  s_and_b32 s29, s7, 0xffff
  s_mov_b32 s30, {WP_BYTES}
  s_mov_b32 s31, 0x00020000
  s_mul_i32 s14, s10, {D * ROWB}
  s_mul_i32 s15, s12, {32 * ROWB}
  s_add_u32 s14, s14, s15
  s_lshl_b32 s15, s13, 1
  s_add_u32 s32, s14, s15
  s_add_u32 s33, s32, {ROWB}
  s_add_u32 s34, s33, {ROWB}
  s_add_u32 s35, s34, {ROWB}
  s_add_u32 s36, s35, {ROWB}
  s_add_u32 s37, s36, {ROWB}
  s_add_u32 s38, s37, {ROWB}
  s_add_u32 s39, s38, {ROWB}
  buffer_load_ushort v10, v5, s[24:27], s32 offen
  buffer_load_ushort v11, v5, s[24:27], s33 offen
  buffer_load_ushort v12, v5, s[24:27], s34 offen
  buffer_load_ushort v13, v5, s[24:27], s35 offen
  buffer_load_ushort v14, v5, s[24:27], s36 offen
  buffer_load_ushort v15, v5, s[24:27], s37 offen
  buffer_load_ushort v16, v5, s[24:27], s38 offen
  buffer_load_ushort v17, v5, s[24:27], s39 offen
  s_lshl_b32 s20, s2, 3
  s_add_u32 s20, s20, s9
  s_mul_i32 s21, s2, 5
  s_add_u32 s21, s21, s9
  s_add_u32 s21, s21, 200
  s_cmp_lt_u32 s9, 8
  s_cselect_b32 s20, s20, s21
  s_mul_i32 s21, s11, {TILES_PER_WAVE}
  s_add_u32 s20, s20, s21
  s_mul_i32 s21, s10, {TILES_PER_LAYER}
  s_add_u32 s20, s20, s21
  s_lshl_b32 s20, s20, 10
  s_waitcnt vmcnt(0)
  v_lshl_or_b32 v20, v11, 16, v10
  v_lshl_or_b32 v21, v13, 16, v12
  v_lshl_or_b32 v22, v15, 16, v14
  v_lshl_or_b32 v23, v17, 16, v16
  buffer_store_dwordx4 v[20:23], v7, s[28:31], s20 offen
{PREP_STAMP if X_STAMP == 5 else ""}
Lprep_end:
  s_endpgm
"""


PREP_STAMP = """
  s_waitcnt vmcnt(0)
  s_memrealtime s[50:51]
  s_load_dwordx2 s[36:37], s[0:1], 32
  s_waitcnt lgkmcnt(0)
  s_cmp_lg_u32 s9, 0
  s_cbranch_scc1 Lprep_end
  s_mov_b32 s40, s36
  s_and_b32 s41, s37, 0xffff
  s_mov_b32 s42, 65536
  s_mov_b32 s43, 0x00020000
  s_mul_i32 s44, s3, 26
  s_add_u32 s44, s44, s2
  s_lshl_b32 s44, s44, 3
  v_mov_b32 v1, 0
  v_mov_b32 v2, s48
  v_mov_b32 v3, s50
  buffer_store_dwordx2 v[2:3], v1, s[40:43], s44 offen
"""

DESC = """
.amdhsa_kernel {name}
  .amdhsa_next_free_vgpr {nvgpr}
  .amdhsa_next_free_sgpr {nsgpr}
  .amdhsa_accum_offset {accoff}
  .amdhsa_group_segment_fixed_size 0
  .amdhsa_kernarg_size 48
  .amdhsa_user_sgpr_count 2
  .amdhsa_user_sgpr_kernarg_segment_ptr 1
  .amdhsa_system_sgpr_workgroup_id_x 1
{extra}.end_amdhsa_kernel
"""

ACC = 0


def acc(c, rf):
    return ACC + (c * 4 + rf) * 4


def bias_reg(c):
    if c < 8:
        c1 = c | 1
        return acc(c1, 1) if (c & 1) == 0 else acc(c1, 0)
    return acc(c, 0)


VM = 208
vW16 = VM + 0
vXA = VM + 1
vEA = VM + 9
vEB = VM + 13
vES = VM + 15
vOG = VM + 16
vOS = VM + 17
vBA = VM + 18
vBS = VM + 19
vT = VM + 20
RING = 0
R = 26
XF = 104
X0C = 136

sX0 = "s[4:7]"
sWP = "s[8:11]"
sOUT = "s[12:15]"
sBS = "s[16:19]"
sWOFF = "s20"
sWAVE = "s21"
sRF = ["0", "s24", "s25", "s26"]
sMASK = "s27"


def x0reg(P, rf, d):
    if P < 6:
        return A(X0C + (P * 4 + rf) * 4 + d)
    return A(X0C + 96 + rf * 2 + d)


class Call:
    def __init__(self, fn):
        self.fn = fn


class Gen:
    def __init__(self):
        self.s = []
        self.nload = 0
        self.free = deque(A(RING + 4 * k) for k in range(R))
        self.borrowed = set()
        self.slot = {}
        self.vmq = []
        self.pre_load_hook = None
        self.borrow_limit = 208
        self.ready_stores = []

    def e(self, *ins):
        self.s.extend(ins)

    def vm(self, tag):
        self.vmq.append(tag)
        assert len(self.vmq) <= 63, "too many outstanding VMEM ops"

    def retire(self, tag):
        if tag in self.vmq:
            k = self.vmq.index(tag)
            self.vmq = self.vmq[k + 1:]

    def can_load(self):
        n = self.nload
        if n >= TILES_PER_WAVE:
            return False
        while self.free and self.free[0] in self.borrowed and n >= self.borrow_limit:
            self.free.popleft()
        if not self.free:
            return False
        need = 1 + (4 if (self.pre_load_hook and self.hook_test(n)) else 0)
        return len(self.vmq) + need <= 61

    def wload_instrs(self):
        if not self.can_load():
            return []
        n = self.nload
        o = []
        if self.pre_load_hook:
            o += self.pre_load_hook(n)
        if n % 4 == 0 and n > 0:
            o.append(salu("s_add_u32 %s, %s, 4096" % (sWOFF, sWOFF)))
        base = self.free.popleft()
        self.slot[n] = base
        o.append(buf_load(base, 4, vW16, sWP, sWOFF, (n % 4) * 1024))
        self.vm(("w", n))
        self.nload += 1
        return o

    def release(self, n, give_back=True):
        base = self.slot[n]
        if give_back(base) if callable(give_back) else give_back:
            self.free.append(base)

    def wslot(self, n):
        return self.slot[n]

    def xfrag_read(self, kstep, p, rf):
        q, m = p // 4, p % 4
        hi = 1 if q >= 4 else 0
        return ds_read(A(XF + 16 * (kstep & 1) + 4 * rf), 4, vXA + m + 4 * hi, (q % 4) * 16384 + rf * 4096)

    def xfrag(self, kstep, rf):
        return A(XF + 16 * (kstep & 1) + 4 * rf)


def gen_main_prologue_text():
    return f"""
.globl {KMAIN}
.p2align 8
.type {KMAIN},@function
{KMAIN}:
  s_cmp_ge_u32 s2, {NWG}
  s_cbranch_scc1 Lmain_end
  s_load_dwordx2 s[28:29], s[0:1], 0       ; x0
  s_load_dwordx2 s[30:31], s[0:1], 16      ; bs
  s_load_dwordx2 s[32:33], s[0:1], 24      ; out
  s_load_dwordx2 s[34:35], s[0:1], 40      ; d_ws
  v_lshrrev_b32 v1, 6, v0
  v_and_b32 v2, 63, v0                     ; lane
  v_and_b32 v3, 15, v2                     ; i
  v_lshrrev_b32 v4, 4, v2                  ; g
  s_nop 0
  v_readfirstlane_b32 {sWAVE}, v1
  s_mov_b32 s24, {16 * ROWB}
  s_mov_b32 s25, {32 * ROWB}
  s_mov_b32 s26, {48 * ROWB}
  s_mov_b32 {sMASK}, 0xffff0000
  s_mov_b32 s22, 4096
  s_mul_i32 s36, s2, {ROWS * ROWB}
  s_mul_i32 {sWOFF}, {sWAVE}, {TILES_PER_WAVE * 1024}
"""


def gen_main_srd_text():
    return f"""
  s_waitcnt lgkmcnt(0)
{"  s_memtime s[68:69]" + chr(10) + "  s_waitcnt lgkmcnt(0)" if X_STAMP == 6 else ""}
  s_add_u32 s4, s28, s36
  s_addc_u32 s5, s29, 0
  s_and_b32 s5, s5, 0xffff
  s_mov_b32 s6, {ROWS * ROWB}
  s_mov_b32 s7, 0x00020000
  s_mov_b32 s8, s34
  s_and_b32 s9, s35, 0xffff
  s_mov_b32 s10, {WP_BYTES}
  s_mov_b32 s11, 0x00020000
  s_add_u32 s12, s32, s36
  s_addc_u32 s13, s33, 0
  s_and_b32 s13, s13, 0xffff
  s_mov_b32 s14, {ROWS * ROWB}
  s_mov_b32 s15, 0x00020000
  s_mov_b32 s16, s30
  s_and_b32 s17, s31, 0xffff
  s_mov_b32 s18, {L * D * 2}
  s_mov_b32 s19, 0x00020000
"""


def gen_main():
    g0 = Gen()
    e = g0.e
    vtid, vwv, vlane, vi, vg = 0, 1, 2, 3, 4
    t0, t1, t2, t3 = vT, vT + 1, vT + 2, vT + 3
    if X_STAMP:
        e(stamp(0))
        e(stamp(14, real=True))
    e(valu("v_lshlrev_b32", vW16, "4", vlane))
    e(valu("v_xor_b32", t0, vg, vi))
    e(valu("v_lshlrev_b32", t0, "4", t0))
    e(valu("v_lshl_add_u32", t0, vi, "8", t0))
    for m in range(4):
        e(valu("v_xor_b32", vXA + m, str(m << 6), t0))
        e(valu("v_add_u32", vXA + 4 + m, "0x10000", vXA + m))
        e(valu("v_lshl_add_u32", vEA + m, vwv, "14", vXA + m))
    e(valu("v_and_b32", t2, "1", vwv))
    e(valu("v_lshlrev_b32", t2, "7", t2))
    e(valu("v_xor_b32", t2, t2, t0))
    e(valu("v_lshrrev_b32", t3, "1", vwv))
    e(valu("v_add_u32", t3, "4", t3))
    e(valu("v_lshl_add_u32", vEB + 0, t3, "14", t2))
    e(valu("v_xor_b32", vEB + 1, "64", vEB + 0))
    e(valu("v_lshrrev_b32", t2, "1", vg))
    e(valu("v_lshl_add_u32", t2, vwv, "1", t2))
    e(valu("v_xor_b32", t2, t2, vi))
    e(valu("v_lshlrev_b32", t2, "4", t2))
    e(valu("v_lshl_add_u32", t2, vi, "8", t2))
    e(valu("v_and_b32", t3, "1", vg))
    e(valu("v_lshl_add_u32", t2, t3, "3", t2))
    e(valu("v_add_u32", vES, str(6 * 16384), t2))
    e(valu("v_mul_u32_u24", t2, str(ROWB), vi))
    e(valu("v_lshl_add_u32", t3, vg, "4", t2))
    e(valu("v_mul_u32_u24", vOG, "384", vwv))
    e(valu("v_add_u32", vOG, vOG, t3))
    e(valu("v_lshl_add_u32", t3, vg, "3", t2))
    e(valu("v_lshl_add_u32", t3, vwv, "5", t3))
    e(valu("v_add_u32", vOS, "1536", t3))
    e(valu("v_mul_u32_u24", t2, "768", vwv))
    e(valu("v_lshl_add_u32", t2, vg, "5", t2))
    e(valu("v_add_u32", vBA, str(BIAS_BASE), t2))
    e(valu("v_lshlrev_b32", t2, "6", vwv))
    e(valu("v_lshl_add_u32", t2, vg, "4", t2))
    e(valu("v_add_u32", vBS, str(BIAS_BASE + 768 * 4), t2))
    pr, pc = vT + 4, vT + 5
    pVA, pVB, pVC, pVL, pVLh, pBo, pBl = vT + 6, vT + 7, vT + 8, vT + 9, vT + 10, vT + 11, vT + 12
    e(valu("v_lshrrev_b32", pr, "4", vtid))
    e(valu("v_and_b32", pc, "15", vtid))
    e(valu("v_mul_u32_u24", t2, str(ROWB), pr))
    e(valu("v_lshl_add_u32", pVA, pc, "4", t2))
    e(valu("v_add_u32", pVB, "256", pVA))
    e(valu("v_add_u32", t3, "512", pVA))
    e(raw("v_cmp_gt_u32 vcc, 8, %s" % rname(pc), "raw", reads=[pc]))
    e(raw("s_nop 1"))
    e(raw("v_cndmask_b32 %s, %s, %s, vcc" % (rname(pVB), rname(t3), rname(pVB)), "valu", reads=[t3, pVB], writes=[pVB]))
    e(valu("v_add_u32", pVC, "1536", pVA))
    e(valu("v_xor_b32", t2, pc, pr))
    e(valu("v_lshlrev_b32", t2, "4", t2))
    e(valu("v_lshl_add_u32", pVL, pr, "8", t2))
    e(valu("v_add_u32", pVLh, "0x10000", pVL))
    e(valu("v_lshlrev_b32", pBo, "2", vtid))
    e(valu("v_lshlrev_b32", pBl, "3", vtid))
    e(valu("v_add_u32", pBl, str(BIAS_BASE), pBl))
    part1 = render(g0.s)

    g = Gen()
    e = g.e
    st = {"kstep": 0, "ntile": 0, "pend": 0}
    STG7 = [A(240)] + [acc(8, 0) + 16 * k for k in range(5)] + [A(X0C + 88)]
    bstage = vT + 13

    def x0_load(q, it):
        if q < 4:
            va, imm = pVA, 384 * q
        elif q < 6:
            va, imm = pVB, 768 * (q - 4)
        else:
            va, imm = pVC, 0
        ins = buf_load(STG7[q] + 4 * it, 4, va, sX0, sRF[it], imm)
        if X_XPOL:
            ins.text += " " + X_XPOL
        g.vm(("x", q, it))
        return ins

    def x0_loads(q):
        return [x0_load(q, it) for it in range(4)]

    def x0_writes(q):
        o = []
        for it in range(4):
            if q < 4:
                o.append(ds_write(pVL, STG7[q] + 4 * it, 4, q * 16384 + it * 4096))
            else:
                o.append(ds_write(pVLh, STG7[q] + 4 * it, 4, (q - 4) * 16384 + it * 4096))
        return o

    def bias_read(l, c):
        if c < 12:
            return ds_read(bias_reg(c), 4, vBA, l * 3328 + 128 * (c // 2) + 16 * (c % 2))
        return ds_read(bias_reg(c), 4, vBS, l * 3328)

    for kk in range(5):
        if kk < 4:
            e(buf_load(bstage + kk, 1, pBo, sBS, "0", 1024 * kk))
        else:
            e(buf_load(bstage + kk, 1, pBo, sBS, "s22", 0))
        g.vm(("b", kk))
    if X_DEEP0:
        for k in range(22):
            b = A(X0C + 4 * k)
            g.free.append(b)
            g.borrowed.add(b)
        e(*x0_loads(0))
        for _ in range(NW0):
            e(*g.wload_instrs())
        xsched = {}
        for q in range(1, 7):
            for it in range(4):
                n_ = 32 * q - XLEAD + XSTEP * it
                if n_ < NW0:
                    e(x0_load(q, it))
                else:
                    xsched.setdefault(n_, []).append((q, it))

        def hook(n):
            return [x0_load(q, it) for (q, it) in xsched.get(n, [])]
        g.pre_load_hook = hook
        g.hook_test = lambda n: n in xsched
        while g.can_load() and g.nload < 64:
            e(*g.wload_instrs())
        e(*x0_writes(0))
        if X_STAMP == 6:
            e(stamp(3))
        g.retire(("x", 0, 3))
    else:
        xs = []
        for q in range(7):
            pass
        raise NotImplementedError
    for kk in range(5):
        e(valu("v_lshlrev_b32", t0, "16", bstage + kk))
        e(valu("v_and_b32", t1, sMASK, bstage + kk))
        e(ds_write(pBl, t0, 2, 2048 * kk))
    if X_STAMP == 6:
        e(stamp(4))
    e(barrier())
    if X_STAMP == 6:
        e(stamp(5))

    XS = [vT + 0, vT + 4]
    TP = [vT + 8, vT + 10, vT + 12, vT + 14]
    U = vT + 16

    def ldsaddr(P):
        return (vEA + P) if P < 4 else (vEB + P - 4)

    def item_valu(l, P, rf, X, dst):
        o = []
        nd = 4 if P < 6 else 2
        for d in range(nd):
            if P < 6:
                ap = acc(2 * P + d // 2, rf) + 2 * (d % 2)
            else:
                ap = acc(12, rf) + 2 * d
            T = TP[d & 1]
            o.append(valu("v_lshlrev_b32", T, "16", X + d))
            o.append(valu("v_and_b32", T + 1, sMASK, X + d))
            if l == 0:
                o.append(valu("v_accvgpr_write_b32", x0reg(P, rf, d), X + d))
                o.append(valu("v_fma_f32", T, T, ap, T))
                o.append(valu("v_fma_f32", T + 1, T + 1, ap + 1, T + 1))
            else:
                U2 = TP[2 + (d & 1)]
                o.append(valu("v_accvgpr_read_b32", U, x0reg(P, rf, d)))
                o.append(valu("v_lshlrev_b32", U2, "16", U))
                o.append(valu("v_and_b32", U2 + 1, sMASK, U))
                o.append(valu("v_fma_f32", T, U2, ap, T))
                o.append(valu("v_fma_f32", T + 1, U2 + 1, ap + 1, T + 1))
            o.append(valu("v_cvt_pk_bf16_f32", dst(d), T, T + 1))
        return o

    def store_instr(X, P, rf):
        g_tag = ("s", P, rf)
        if P < 6:
            ins = buf_store(X, 4, vOG, sOUT, sRF[rf], 64 * P)
        else:
            ins = buf_store(X, 2, vOS, sOUT, sRF[rf], 0)
        if X_SPOL:
            ins.text += " " + X_SPOL
        return ins

    def E0_side(l):
        o = []
        items = [(P, rf) for P in range(4) for rf in range(4)]
        o.append(ds_read(XS[0], 4, ldsaddr(0), 0))
        for idx, (P, rf) in enumerate(items):
            if idx + 1 < len(items):
                P2, r2 = items[idx + 1]
                o.append(ds_read(XS[(idx + 1) & 1], 4, ldsaddr(P2), r2 * 4096))
            X = XS[idx & 1]
            c0 = 2 * P
            o += item_valu(l, P, rf, X, lambda d: acc(c0, rf) + d)
            if l == L - 1:
                o.append(Call(lambda P=P, rf=rf, c0=c0: g.ready_stores.append(store_instr(acc(c0, rf), P, rf))))
                if X_GROW2:
                    o.append(Call(lambda P=P, rf=rf: g.free.append(x0reg(P, rf, 0))))
                if rf == 3 and X_GROW2:
                    def grow(c0=c0):
                        for r4 in range(4):
                            g.free.append(acc(c0 + 1, r4))
                    o.append(Call(grow))
            if rf == 3 and l < L - 1:
                o.append(bias_read(l + 1, c0))
                o.append(bias_read(l + 1, c0 + 1))
        return o

    def E1_side(l):
        o = []
        items = [(P, rf) for P in (4, 5) for rf in range(4)] + [(6, rf) for rf in range(4)]

        def rd(idx):
            P, rf = items[idx]
            if P < 6:
                return ds_read(XS[idx & 1], 4, ldsaddr(P), rf * 4096)
            return ds_read(XS[idx & 1], 2, vES, rf * 4096)
        o.append(rd(0))
        for idx, (P, rf) in enumerate(items):
            if idx + 1 < len(items):
                o.append(rd(idx + 1))
            X = XS[idx & 1]
            o += item_valu(l, P, rf, X, lambda d: X + d)
            if l < L - 1:
                if P < 6:
                    o.append(ds_write(ldsaddr(P), X, 4, rf * 4096))
                else:
                    o.append(ds_write(vES, X, 2, rf * 4096))
            else:
                o.append(store_instr(X, P, rf))
        if l < L - 1:
            for c in range(8, 13):
                o.append(bias_read(l + 1, c))
        return o

    def phase(tiles, side, side_steps, barrier_at=(), extra=None, prefetch_next=True, first_reads=True,
              give_back=True, maxrefill=1, stamp_at=None):
        nt = len(tiles)
        extra = extra or {}
        nreal = sum(1 for x in side if not isinstance(x, Call))
        ntiles_side = nt * side_steps
        rate = (nreal / float(ntiles_side)) if ntiles_side else 0.0
        quota = 0.0
        si = [0]

        def take(n):
            out = []
            cnt_ = 0
            while si[0] < len(side) and (cnt_ < n or isinstance(side[si[0]], Call)):
                x = side[si[0]]
                si[0] += 1
                out.append(x)
                if not isinstance(x, Call):
                    cnt_ += 1
            return out

        def emit_list(lst):
            for x in lst:
                if isinstance(x, Call):
                    x.fn()
                else:
                    e(x)

        if first_reads:
            for rf in range(4):
                e(g.xfrag_read(st["kstep"], 0, rf))
        for p in range(NP):
            if p in barrier_at:
                if stamp_at and p in stamp_at:
                    e(stamp(stamp_at[p]))
                e(barrier())
            ex_p = list(extra.get(p, []))
            for idx, c in enumerate(tiles):
                n = st["ntile"]
                ws_ = g.wslot(n)
                if p == 0:
                    order = [(rf, bias_reg(c)) for rf in (3, 2, 1, 0)]
                else:
                    order = [(rf, acc(c, rf)) for rf in range(4)]
                nside = 0
                if p < side_steps:
                    quota += rate
                    nside = int(quota + 1e-9)
                    quota -= nside
                fixed0 = []
                for _ in range(min(st["pend"], maxrefill) if st["pend"] else 0):
                    fixed0 += g.wload_instrs()
                k2 = 0
                while st["pend"] and k2 < maxrefill - 1 and g.can_load():
                    fixed0 += g.wload_instrs(); k2 += 1
                st["pend"] = 0
                fixed1 = []
                if 1 <= idx <= 4:
                    if p + 1 < NP:
                        fixed1.append(g.xfrag_read(st["kstep"] + 1, p + 1, idx - 1))
                    elif prefetch_next:
                        fixed1.append(g.xfrag_read(st["kstep"] + 1, 0, idx - 1))
                if ex_p:
                    fixed1.append(ex_p.pop(0))
                if g.ready_stores and g.nload >= TILES_PER_WAVE and (st["ntile"] % SPACE == 0):
                    x_ = g.ready_stores.pop(0)
                    if not os.environ.get("X_NOSTORE"):
                        fixed1.append(x_)
                sd = take(nside) if nside else []
                nsd = sum(1 for x in sd if not isinstance(x, Call))
                cap = [max(0, 2 - len(fixed0)), max(0, 2 - len(fixed1)), 2, 1]
                cnt = [0, 0, 0, 0]
                k = 0
                for gi in (2, 1, 0, 3):
                    m_ = min(cap[gi], nsd - k)
                    cnt[gi] += m_
                    k += m_
                gi = 0
                while k < nsd:
                    cnt[gi % 4] += 1; k += 1; gi += 1
                kk = 0
                for j, (rf, csrc) in enumerate(order):
                    m = mfma16(acc(c, rf), ws_, g.xfrag(st["kstep"], rf), csrc)
                    exr = []
                    if j == 0 and (n % 2 == 0) and (n + 1) in g.slot:
                        exr += regs(g.wslot(n + 1), 4)
                        g.retire(("w", n + 1))
                    elif j == 0:
                        g.retire(("w", n))
                    if j == 0 and idx == 0:
                        for r2 in range(4):
                            exr += regs(g.xfrag(st["kstep"], r2), 4)
                    m.extra = frozenset(exr)
                    e(m)
                    if j == 0:
                        e(*fixed0)
                    if j == 1:
                        e(*fixed1)
                    c_ = cnt[j]
                    while kk < len(sd) and (c_ > 0 or isinstance(sd[kk], Call)):
                        if isinstance(sd[kk], Call):
                            sd[kk].fn()
                        else:
                            e(sd[kk]); c_ -= 1
                        kk += 1
                g.release(n, give_back)
                st["pend"] = 1
                st["ntile"] += 1
            emit_list(ex_p)
            if p == side_steps - 1:
                emit_list(side[si[0]:]); si[0] = len(side)
            st["kstep"] += 1

    for c in range(8):
        e(bias_read(0, c))
    extra = {}
    bar = []
    for q in range(1, 7):
        extra[4 * q - 2] = x0_writes(q)
        bar.append(4 * q - 1)
    extra[24] = [bias_read(0, c) for c in range(8, 13)]
    if X_STAMP:
        e(stamp(1))
    phase(PASSES[0], [], 0, barrier_at=tuple(bar), extra=extra,
          give_back=lambda b: not (b in g.borrowed and g.nload >= 208), maxrefill=2,
          stamp_at=({3: 2, 7: 3, 11: 4, 15: 5, 19: 6, 23: 7} if X_STAMP == 3 else ({3: 6, 7: 7, 11: 8} if X_STAMP == 6 else None)))
    g.free = deque(b for b in g.free if b not in g.borrowed)
    assert all(g.slot[n] not in g.borrowed for n in range(208, g.nload))
    g.pre_load_hook = None
    for l in range(L):
        if l > 0:
            if X_STAMP and X_STAMP not in (3, 6):
                e(stamp(1 + 3 * l))
            phase(PASSES[0], E1_side(l - 1), 13, barrier_at=(14,))
        if X_STAMP and X_STAMP not in (3, 6):
            e(stamp(2 + 3 * l))
        if X_STAMP == 3 and l == 0:
            e(stamp(8))
        phase(PASSES[1], E0_side(l), NP, prefetch_next=False, first_reads=False,
              maxrefill=3 if l == L - 1 else 1)
        if X_STAMP and X_STAMP not in (3, 6):
            e(stamp(3 + 3 * l))
        if l < L - 1:
            e(barrier())
            for P in range(4):
                for rf in range(4):
                    e(ds_write(ldsaddr(P), acc(2 * P, rf), 4, rf * 4096))
            e(barrier())
        else:
            e(*g.ready_stores)
            g.ready_stores = []
            e(*E1_side(l))
    if X_STAMP:
        e(drain_vm())
        e(stamp(10))
        e(stamp(15, real=True))
        e(raw("s_cmp_ge_u32 s2, %d" % (256 if X_STAMP in (2, 5) else (1 if X_STAMP == 4 else 16))))
        e(raw("s_cbranch_scc1 Lmain_end"))
        e(raw("s_load_dwordx2 s[36:37], s[0:1], 32"))
        e(raw("s_waitcnt lgkmcnt(0)"))
        e(raw("s_mov_b32 s40, s36"))
        e(raw("s_and_b32 s41, s37, 0xffff"))
        e(raw("s_mov_b32 s42, %d" % (256 if X_STAMP == 4 else 65536)))
        e(raw("s_mov_b32 s43, 0x00020000"))
        e(raw("s_lshl_b32 s44, s2, 2"))
        e(raw("s_add_u32 s44, s44, %s" % sWAVE))
        e(raw("s_lshl_b32 s44, s44, 6"))
        e(raw("v_mov_b32 v1, 0"))
        for k in range(16):
            e(raw("v_mov_b32 v2, s%d" % (64 + 2 * k)))
            e(raw("buffer_store_dword v2, v1, s[40:43], s44 offen offset:%d" % (4 * k)))
    s = insert_waits(g.s)
    s = pad_hazards(s, verbose=True)
    txt = gen_main_prologue_text() + part1 + gen_main_srd_text() + render(s) + "\nLmain_end:\n  s_endpgm\n"
    return txt


def main():
    out = sys.argv[1] if len(sys.argv) > 1 else "standalone__cross_network_dcn__recsys.s"
    hdr = f"""; DCN-v2 cross network, 3 fused layers, bf16 MFMA (hand-designed schedule, emitted by my own generator script).
; @launch kernel={KPREP} grid=({NP},12,1) block=(832,1,1) lds=0
; @launch kernel={KMAIN} grid=({NWG},1,1) block=(256,1,1) lds={LDS_BYTES}
.amdgcn_target "amdgcn-amd-amdhsa--gfx950"
.text
"""
    txt = hdr + gen_prep() + gen_main()
    txt += '.section .rodata,"a"\n.p2align 6\n'
    txt += DESC.format(name=KPREP, nvgpr=32, nsgpr=56, accoff=32, extra="  .amdhsa_system_sgpr_workgroup_id_y 1\n")
    txt += ".p2align 6\n"
    txt += DESC.format(name=KMAIN, nvgpr=512, nsgpr=100, accoff=256, extra="")
    open(out, "w").write(txt)
    print("wrote", out, len(txt), "bytes")


if __name__ == "__main__":
    main()
```

```python
import sys, os
from collections import deque
from fw import *

X_STAMP = int(os.environ.get("X_STAMP", "0"))
X_DEEP0 = int(os.environ.get("X_DEEP0", "1"))
X_GROW2 = int(os.environ.get("X_GROW2", "1"))
X_XPOL = os.environ.get("X_XPOL", "nt")
X_SPOL = os.environ.get("X_SPOL", "")
SPACE = int(os.environ.get("SPACE", "3"))
NW0 = int(os.environ.get("NW0", "28"))
XSTEP = int(os.environ.get("XSTEP", "0"))
XLEAD = int(os.environ.get("XLEAD", "300"))

NB, D, L = 16384, 832, 3
ROWS = 64
NWG = NB // ROWS
ROWB = D * 2
NP = 26
NT = 13
TILES_PER_LAYER = NP * NT
TILES_PER_WAVE = L * TILES_PER_LAYER
WP_BYTES = 4 * TILES_PER_WAVE * 1024
XT_BYTES = 7 * 16384
BIAS_BASE = XT_BYTES
LDS_BYTES = XT_BYTES + 10240
KMAIN = "standalone__cross_network_dcn__recsys_kernel"
KPREP = "dcn_prep_kernel"


def kb_of_p(p):
    if p < 16:
        return 6 * (p // 4) + (p % 4)
    p2 = p - 16
    if p2 < 8:
        return 6 * (p2 // 2) + 4 + (p2 % 2)
    return 24 + (p2 - 8)


def feat(w, c, i):
    if c < 12:
        return 192 * w + 32 * (c // 2) + 8 * (i // 4) + 4 * (c % 2) + (i % 4)
    return 768 + 16 * w + i


PASSES = [list(range(8)), list(range(8, 13))]


def stream_index(p, c):
    base = 0
    for tl in PASSES:
        if c in tl:
            return base + p * len(tl) + tl.index(c)
        base += NP * len(tl)
    raise ValueError


def gen_prep():
    return f"""
.globl {KPREP}
.p2align 8
.type {KPREP},@function
{KPREP}:
  s_cmp_ge_u32 s2, {NP}
  s_cbranch_scc1 Lprep_end
{"  s_memrealtime s[48:49]" if X_STAMP == 5 else ""}
  s_load_dwordx2 s[4:5], s[0:1], 8
  s_load_dwordx2 s[6:7], s[0:1], 40      ; d_ws
  v_lshrrev_b32 v1, 6, v0
  v_and_b32 v2, 63, v0                   ; lane
  v_and_b32 v3, 15, v2                   ; i
  v_lshrrev_b32 v4, 4, v2                ; g
  s_nop 0
  v_readfirstlane_b32 s9, v1             ; c
  s_lshr_b32 s10, s3, 2                  ; l
  s_and_b32 s11, s3, 3                   ; w
  ; kb(p)
  s_lshr_b32 s12, s2, 2
  s_mul_i32 s12, s12, 6
  s_and_b32 s13, s2, 3
  s_add_u32 s12, s12, s13                ; p<16
  s_sub_u32 s13, s2, 16                  ; p2
  s_lshr_b32 s14, s13, 1
  s_mul_i32 s14, s14, 6
  s_and_b32 s15, s13, 1
  s_add_u32 s14, s14, s15
  s_add_u32 s14, s14, 4                  ; 16<=p<24
  s_cmp_lt_u32 s2, 16
  s_cselect_b32 s12, s12, s14
  s_cmp_lt_u32 s2, 24
  s_cselect_b32 s12, s12, s2             ; p>=24 : kb = p
  ; featbase = c<12 ? 192w + 32(c>>1) + 4(c&1) : 768 + 16w
  s_mul_i32 s13, s11, 192
  s_lshr_b32 s14, s9, 1
  s_lshl_b32 s14, s14, 5
  s_add_u32 s13, s13, s14
  s_and_b32 s14, s9, 1
  s_lshl_b32 s14, s14, 2
  s_add_u32 s13, s13, s14
  s_lshl_b32 s14, s11, 4
  s_add_u32 s14, s14, 768
  s_cmp_lt_u32 s9, 12
  s_cselect_b32 s13, s13, s14            ; featbase
  v_lshrrev_b32 v5, 2, v3
  v_lshlrev_b32 v5, 3, v5
  v_and_b32 v6, 3, v3
  v_add_u32 v5, v5, v6                   ; 8*(i>>2) + (i&3)
  v_cmp_gt_u32 vcc, 12, v1
  s_nop 1
  v_cndmask_b32 v5, v3, v5, vcc          ; c<12 ? .. : i
  v_lshlrev_b32 v5, 1, v5                ; *2 bytes
  v_mul_u32_u24 v6, 13312, v4            ; 8*g*1664
  v_add_u32 v5, v5, v6                   ; voffset
  v_lshlrev_b32 v7, 4, v2                ; lane*16
  s_waitcnt lgkmcnt(0)
  s_mov_b32 s24, s4
  s_and_b32 s25, s5, 0xffff
  s_mov_b32 s26, {L * D * ROWB}
  s_mov_b32 s27, 0x00020000
  s_mov_b32 s28, s6
  s_and_b32 s29, s7, 0xffff
  s_mov_b32 s30, {WP_BYTES}
  s_mov_b32 s31, 0x00020000
  s_mul_i32 s14, s10, {D * ROWB}
  s_mul_i32 s15, s12, {32 * ROWB}
  s_add_u32 s14, s14, s15
  s_lshl_b32 s15, s13, 1
  s_add_u32 s32, s14, s15
  s_add_u32 s33, s32, {ROWB}
  s_add_u32 s34, s33, {ROWB}
  s_add_u32 s35, s34, {ROWB}
  s_add_u32 s36, s35, {ROWB}
  s_add_u32 s37, s36, {ROWB}
  s_add_u32 s38, s37, {ROWB}
  s_add_u32 s39, s38, {ROWB}
  buffer_load_ushort v10, v5, s[24:27], s32 offen
  buffer_load_ushort v11, v5, s[24:27], s33 offen
  buffer_load_ushort v12, v5, s[24:27], s34 offen
  buffer_load_ushort v13, v5, s[24:27], s35 offen
  buffer_load_ushort v14, v5, s[24:27], s36 offen
  buffer_load_ushort v15, v5, s[24:27], s37 offen
  buffer_load_ushort v16, v5, s[24:27], s38 offen
  buffer_load_ushort v17, v5, s[24:27], s39 offen
  s_lshl_b32 s20, s2, 3
  s_add_u32 s20, s20, s9
  s_mul_i32 s21, s2, 5
  s_add_u32 s21, s21, s9
  s_add_u32 s21, s21, 200
  s_cmp_lt_u32 s9, 8
  s_cselect_b32 s20, s20, s21
  s_mul_i32 s21, s11, {TILES_PER_WAVE}
  s_add_u32 s20, s20, s21
  s_mul_i32 s21, s10, {TILES_PER_LAYER}
  s_add_u32 s20, s20, s21
  s_lshl_b32 s20, s20, 10
  s_waitcnt vmcnt(0)
  v_lshl_or_b32 v20, v11, 16, v10
  v_lshl_or_b32 v21, v13, 16, v12
  v_lshl_or_b32 v22, v15, 16, v14
  v_lshl_or_b32 v23, v17, 16, v16
  buffer_store_dwordx4 v[20:23], v7, s[28:31], s20 offen
{PREP_STAMP if X_STAMP == 5 else ""}
Lprep_end:
  s_endpgm
"""


PREP_STAMP = """
  s_waitcnt vmcnt(0)
  s_memrealtime s[50:51]
  s_load_dwordx2 s[36:37], s[0:1], 32
  s_waitcnt lgkmcnt(0)
  s_cmp_lg_u32 s9, 0
  s_cbranch_scc1 Lprep_end
  s_mov_b32 s40, s36
  s_and_b32 s41, s37, 0xffff
  s_mov_b32 s42, 65536
  s_mov_b32 s43, 0x00020000
  s_mul_i32 s44, s3, 26
  s_add_u32 s44, s44, s2
  s_lshl_b32 s44, s44, 3
  v_mov_b32 v1, 0
  v_mov_b32 v2, s48
  v_mov_b32 v3, s50
  buffer_store_dwordx2 v[2:3], v1, s[40:43], s44 offen
"""

DESC = """
.amdhsa_kernel {name}
  .amdhsa_next_free_vgpr {nvgpr}
  .amdhsa_next_free_sgpr {nsgpr}
  .amdhsa_accum_offset {accoff}
  .amdhsa_group_segment_fixed_size 0
  .amdhsa_kernarg_size 48
  .amdhsa_user_sgpr_count 2
  .amdhsa_user_sgpr_kernarg_segment_ptr 1
  .amdhsa_system_sgpr_workgroup_id_x 1
{extra}.end_amdhsa_kernel
"""

ACC = 0


def acc(c, rf):
    return ACC + (c * 4 + rf) * 4


def bias_reg(c):
    if c < 8:
        c1 = c | 1
        return acc(c1, 1) if (c & 1) == 0 else acc(c1, 0)
    return acc(c, 0)


VM = 208
vW16 = VM + 0
vXA = VM + 1
vEA = VM + 9
vEB = VM + 13
vES = VM + 15
vOG = VM + 16
vOS = VM + 17
vBA = VM + 18
vBS = VM + 19
vT = VM + 20
RING = 0
R = 26
XF = 104
X0C = 136

sX0 = "s[4:7]"
sWP = "s[8:11]"
sOUT = "s[12:15]"
sBS = "s[16:19]"
sWOFF = "s20"
sWAVE = "s21"
sRF = ["0", "s24", "s25", "s26"]
sMASK = "s27"


def x0reg(P, rf, d):
    if P < 6:
        return A(X0C + (P * 4 + rf) * 4 + d)
    return A(X0C + 96 + rf * 2 + d)


VARIANT = [0]
NVAR = int(os.environ.get("NVAR", "1"))


class Call:
    def __init__(self, fn):
        self.fn = fn


class Gen:
    def __init__(self):
        self.s = []
        self.nload = 0
        self.free = deque(A(RING + 4 * k) for k in range(R))
        self.borrowed = set()
        self.slot = {}
        self.vmq = []
        self.pre_load_hook = None
        self.borrow_limit = 208
        self.ready_stores = []

    def e(self, *ins):
        self.s.extend(ins)

    def vm(self, tag):
        self.vmq.append(tag)
        assert len(self.vmq) <= 63, "too many outstanding VMEM ops"

    def retire(self, tag):
        if tag in self.vmq:
            k = self.vmq.index(tag)
            self.vmq = self.vmq[k + 1:]

    def can_load(self):
        n = self.nload
        if n >= TILES_PER_WAVE:
            return False
        while self.free and self.free[0] in self.borrowed and n >= self.borrow_limit:
            self.free.popleft()
        if not self.free:
            return False
        need = 1 + (4 if (self.pre_load_hook and self.hook_test(n)) else 0)
        return len(self.vmq) + need <= 61

    def wload_instrs(self):
        if not self.can_load():
            return []
        n = self.nload
        o = []
        if self.pre_load_hook:
            o += self.pre_load_hook(n)
        if n % 4 == 0 and n > 0:
            o.append(salu("s_add_u32 %s, %s, 4096" % (sWOFF, sWOFF)))
        base = self.free.popleft()
        self.slot[n] = base
        o.append(buf_load(base, 4, vW16, sWP, sWOFF, (n % 4) * 1024))
        self.vm(("w", n))
        self.nload += 1
        return o

    def release(self, n, give_back=True):
        base = self.slot[n]
        if give_back(base) if callable(give_back) else give_back:
            self.free.append(base)

    def wslot(self, n):
        return self.slot[n]

    def xfrag_read(self, kstep, p, rf):
        q, m = p // 4, p % 4
        hi = 1 if q >= 4 else 0
        return ds_read(A(XF + 16 * (kstep & 1) + 4 * rf), 4, vXA + m + 4 * hi, (q % 4) * 16384 + rf * 4096)

    def xfrag(self, kstep, rf):
        return A(XF + 16 * (kstep & 1) + 4 * rf)


def gen_main_prologue_text():
    return f"""
.globl {KMAIN}
.p2align 8
.type {KMAIN},@function
{KMAIN}:
  s_cmp_ge_u32 s2, {NWG}
  s_cbranch_scc1 Lmain_end
  s_load_dwordx2 s[28:29], s[0:1], 0       ; x0
  s_load_dwordx2 s[30:31], s[0:1], 16      ; bs
  s_load_dwordx2 s[32:33], s[0:1], 24      ; out
  s_load_dwordx2 s[34:35], s[0:1], 40      ; d_ws
  v_lshrrev_b32 v1, 6, v0
  v_and_b32 v2, 63, v0                     ; lane
  v_and_b32 v3, 15, v2                     ; i
  v_lshrrev_b32 v4, 4, v2                  ; g
  s_nop 0
  v_readfirstlane_b32 {sWAVE}, v1
  s_mov_b32 s24, {16 * ROWB}
  s_mov_b32 s25, {32 * ROWB}
  s_mov_b32 s26, {48 * ROWB}
  s_mov_b32 {sMASK}, 0xffff0000
  s_mov_b32 s22, 4096
  s_mul_i32 s36, s2, {ROWS * ROWB}
  s_mul_i32 {sWOFF}, {sWAVE}, {TILES_PER_WAVE * 1024}
"""


def gen_main_srd_text():
    return f"""
  s_waitcnt lgkmcnt(0)
{"  s_memtime s[68:69]" + chr(10) + "  s_waitcnt lgkmcnt(0)" if X_STAMP == 6 else ""}
  s_add_u32 s4, s28, s36
  s_addc_u32 s5, s29, 0
  s_and_b32 s5, s5, 0xffff
  s_mov_b32 s6, {ROWS * ROWB}
  s_mov_b32 s7, 0x00020000
  s_mov_b32 s8, s34
  s_and_b32 s9, s35, 0xffff
  s_mov_b32 s10, {WP_BYTES}
  s_mov_b32 s11, 0x00020000
  s_add_u32 s12, s32, s36
  s_addc_u32 s13, s33, 0
  s_and_b32 s13, s13, 0xffff
  s_mov_b32 s14, {ROWS * ROWB}
  s_mov_b32 s15, 0x00020000
  s_mov_b32 s16, s30
  s_and_b32 s17, s31, 0xffff
  s_mov_b32 s18, {L * D * 2}
  s_mov_b32 s19, 0x00020000
"""


def gen_main():
    g0 = Gen()
    e = g0.e
    vtid, vwv, vlane, vi, vg = 0, 1, 2, 3, 4
    t0, t1, t2, t3 = vT, vT + 1, vT + 2, vT + 3
    if X_STAMP:
        e(stamp(0))
        e(stamp(14, real=True))
    e(valu("v_lshlrev_b32", vW16, "4", vlane))
    e(valu("v_xor_b32", t0, vg, vi))
    e(valu("v_lshlrev_b32", t0, "4", t0))
    e(valu("v_lshl_add_u32", t0, vi, "8", t0))
    for m in range(4):
        e(valu("v_xor_b32", vXA + m, str(m << 6), t0))
        e(valu("v_add_u32", vXA + 4 + m, "0x10000", vXA + m))
        e(valu("v_lshl_add_u32", vEA + m, vwv, "14", vXA + m))
    e(valu("v_and_b32", t2, "1", vwv))
    e(valu("v_lshlrev_b32", t2, "7", t2))
    e(valu("v_xor_b32", t2, t2, t0))
    e(valu("v_lshrrev_b32", t3, "1", vwv))
    e(valu("v_add_u32", t3, "4", t3))
    e(valu("v_lshl_add_u32", vEB + 0, t3, "14", t2))
    e(valu("v_xor_b32", vEB + 1, "64", vEB + 0))
    e(valu("v_lshrrev_b32", t2, "1", vg))
    e(valu("v_lshl_add_u32", t2, vwv, "1", t2))
    e(valu("v_xor_b32", t2, t2, vi))
    e(valu("v_lshlrev_b32", t2, "4", t2))
    e(valu("v_lshl_add_u32", t2, vi, "8", t2))
    e(valu("v_and_b32", t3, "1", vg))
    e(valu("v_lshl_add_u32", t2, t3, "3", t2))
    e(valu("v_add_u32", vES, str(6 * 16384), t2))
    e(valu("v_mul_u32_u24", t2, str(ROWB), vi))
    e(valu("v_lshl_add_u32", t3, vg, "4", t2))
    e(valu("v_mul_u32_u24", vOG, "384", vwv))
    e(valu("v_add_u32", vOG, vOG, t3))
    e(valu("v_lshl_add_u32", t3, vg, "3", t2))
    e(valu("v_lshl_add_u32", t3, vwv, "5", t3))
    e(valu("v_add_u32", vOS, "1536", t3))
    e(valu("v_mul_u32_u24", t2, "768", vwv))
    e(valu("v_lshl_add_u32", t2, vg, "5", t2))
    e(valu("v_add_u32", vBA, str(BIAS_BASE), t2))
    e(valu("v_lshlrev_b32", t2, "6", vwv))
    e(valu("v_lshl_add_u32", t2, vg, "4", t2))
    e(valu("v_add_u32", vBS, str(BIAS_BASE + 768 * 4), t2))
    pr, pc = vT + 4, vT + 5
    pVA, pVB, pVC, pVL, pVLh, pBo, pBl = vT + 6, vT + 7, vT + 8, vT + 9, vT + 10, vT + 11, vT + 12
    e(valu("v_lshrrev_b32", pr, "4", vtid))
    e(valu("v_and_b32", pc, "15", vtid))
    e(valu("v_mul_u32_u24", t2, str(ROWB), pr))
    e(valu("v_lshl_add_u32", pVA, pc, "4", t2))
    e(valu("v_add_u32", pVB, "256", pVA))
    e(valu("v_add_u32", t3, "512", pVA))
    e(raw("v_cmp_gt_u32 vcc, 8, %s" % rname(pc), "raw", reads=[pc]))
    e(raw("s_nop 1"))
    e(raw("v_cndmask_b32 %s, %s, %s, vcc" % (rname(pVB), rname(t3), rname(pVB)), "valu", reads=[t3, pVB], writes=[pVB]))
    e(valu("v_add_u32", pVC, "1536", pVA))
    e(valu("v_xor_b32", t2, pc, pr))
    e(valu("v_lshlrev_b32", t2, "4", t2))
    e(valu("v_lshl_add_u32", pVL, pr, "8", t2))
    e(valu("v_add_u32", pVLh, "0x10000", pVL))
    e(valu("v_lshlrev_b32", pBo, "2", vtid))
    e(valu("v_lshlrev_b32", pBl, "3", vtid))
    e(valu("v_add_u32", pBl, str(BIAS_BASE), pBl))
    part1 = render(g0.s)

    g = Gen()
    e = g.e
    st = {"kstep": 0, "ntile": 0, "pend": 0}
    STG7 = [A(240)] + [acc(8, 0) + 16 * k for k in range(5)] + [A(X0C + 88)]
    bstage = vT + 13

    def x0_load(q, it):
        if q < 4:
            va, imm = pVA, 384 * q
        elif q < 6:
            va, imm = pVB, 768 * (q - 4)
        else:
            va, imm = pVC, 0
        ins = buf_load(STG7[q] + 4 * it, 4, va, sX0, sRF[it], imm)
        if X_XPOL:
            ins.text += " " + X_XPOL
        g.vm(("x", q, it))
        return ins

    def x0_loads(q):
        return [x0_load(q, it) for it in range(4)]

    def x0_writes(q):
        o = []
        for it in range(4):
            if q < 4:
                o.append(ds_write(pVL, STG7[q] + 4 * it, 4, q * 16384 + it * 4096))
            else:
                o.append(ds_write(pVLh, STG7[q] + 4 * it, 4, (q - 4) * 16384 + it * 4096))
        return o

    def bias_read(l, c):
        if c < 12:
            return ds_read(bias_reg(c), 4, vBA, l * 3328 + 128 * (c // 2) + 16 * (c % 2))
        return ds_read(bias_reg(c), 4, vBS, l * 3328)

    for kk in range(5):
        if kk < 4:
            e(buf_load(bstage + kk, 1, pBo, sBS, "0", 1024 * kk))
        else:
            e(buf_load(bstage + kk, 1, pBo, sBS, "s22", 0))
        g.vm(("b", kk))
    if X_DEEP0:
        for k in range(22):
            b = A(X0C + 4 * k)
            g.free.append(b)
            g.borrowed.add(b)
        e(*x0_loads(0))
        for _ in range(NW0):
            e(*g.wload_instrs())
        xsched = {}
        for q in range(1, 7):
            for it in range(4):
                n_ = 32 * q - XLEAD + XSTEP * it
                if n_ < NW0:
                    e(x0_load(q, it))
                else:
                    xsched.setdefault(n_, []).append((q, it))

        def hook(n):
            return [x0_load(q, it) for (q, it) in xsched.get(n, [])]
        g.pre_load_hook = hook
        g.hook_test = lambda n: n in xsched
        while g.can_load() and g.nload < 64:
            e(*g.wload_instrs())
        e(*x0_writes(0))
        if X_STAMP == 6:
            e(stamp(3))
        g.retire(("x", 0, 3))
    else:
        xs = []
        for q in range(7):
            pass
        raise NotImplementedError
    for kk in range(5):
        e(valu("v_lshlrev_b32", t0, "16", bstage + kk))
        e(valu("v_and_b32", t1, sMASK, bstage + kk))
        e(ds_write(pBl, t0, 2, 2048 * kk))
    if X_STAMP == 6:
        e(stamp(4))
    e(barrier())
    if X_STAMP == 6:
        e(stamp(5))

    XS = [vT + 0, vT + 4]
    TP = [vT + 8, vT + 10, vT + 12, vT + 14]
    U = vT + 16

    def ldsaddr(P):
        return (vEA + P) if P < 4 else (vEB + P - 4)

    def item_valu(l, P, rf, X, dst):
        o = []
        nd = 4 if P < 6 else 2
        for d in range(nd):
            if P < 6:
                ap = acc(2 * P + d // 2, rf) + 2 * (d % 2)
            else:
                ap = acc(12, rf) + 2 * d
            T = TP[d & 1]
            o.append(valu("v_lshlrev_b32", T, "16", X + d))
            o.append(valu("v_and_b32", T + 1, sMASK, X + d))
            if l == 0:
                o.append(valu("v_accvgpr_write_b32", x0reg(P, rf, d), X + d))
                o.append(valu("v_fma_f32", T, T, ap, T))
                o.append(valu("v_fma_f32", T + 1, T + 1, ap + 1, T + 1))
            else:
                U2 = TP[2 + (d & 1)]
                o.append(valu("v_accvgpr_read_b32", U, x0reg(P, rf, d)))
                o.append(valu("v_lshlrev_b32", U2, "16", U))
                o.append(valu("v_and_b32", U2 + 1, sMASK, U))
                o.append(valu("v_fma_f32", T, U2, ap, T))
                o.append(valu("v_fma_f32", T + 1, U2 + 1, ap + 1, T + 1))
            o.append(valu("v_cvt_pk_bf16_f32", dst(d), T, T + 1))
        return o

    def store_instr(X, P, rf):
        g_tag = ("s", P, rf)
        if P < 6:
            ins = buf_store(X, 4, vOG, sOUT, sRF[rf], 64 * P)
        else:
            ins = buf_store(X, 2, vOS, sOUT, sRF[rf], 0)
        if X_SPOL:
            ins.text += " " + X_SPOL
        return ins

    def E0_side(l):
        o = []
        items = [(P, rf) for P in range(4) for rf in range(4)]
        o.append(ds_read(XS[0], 4, ldsaddr(0), 0))
        for idx, (P, rf) in enumerate(items):
            if idx + 1 < len(items):
                P2, r2 = items[idx + 1]
                o.append(ds_read(XS[(idx + 1) & 1], 4, ldsaddr(P2), r2 * 4096))
            X = XS[idx & 1]
            c0 = 2 * P
            o += item_valu(l, P, rf, X, lambda d: acc(c0, rf) + d)
            if l == L - 1:
                o.append(Call(lambda P=P, rf=rf, c0=c0: g.ready_stores.append(store_instr(acc(c0, rf), P, rf))))
                if X_GROW2:
                    o.append(Call(lambda P=P, rf=rf: g.free.append(x0reg(P, rf, 0))))
                if rf == 3 and X_GROW2:
                    def grow(c0=c0):
                        for r4 in range(4):
                            g.free.append(acc(c0 + 1, r4))
                    o.append(Call(grow))
            if rf == 3 and l < L - 1:
                o.append(bias_read(l + 1, c0))
                o.append(bias_read(l + 1, c0 + 1))
        return o

    def E1_side(l):
        o = []
        items = [(P, rf) for P in (4, 5) for rf in range(4)] + [(6, rf) for rf in range(4)]

        def rd(idx):
            P, rf = items[idx]
            if P < 6:
                return ds_read(XS[idx & 1], 4, ldsaddr(P), rf * 4096)
            return ds_read(XS[idx & 1], 2, vES, rf * 4096)
        o.append(rd(0))
        for idx, (P, rf) in enumerate(items):
            if idx + 1 < len(items):
                o.append(rd(idx + 1))
            X = XS[idx & 1]
            o += item_valu(l, P, rf, X, lambda d: X + d)
            if l < L - 1:
                if P < 6:
                    o.append(ds_write(ldsaddr(P), X, 4, rf * 4096))
                else:
                    o.append(ds_write(vES, X, 2, rf * 4096))
            else:
                o.append(store_instr(X, P, rf))
        if l < L - 1:
            for c in range(8, 13):
                o.append(bias_read(l + 1, c))
        return o

    def phase(tiles, side, side_steps, barrier_at=(), extra=None, prefetch_next=True, first_reads=True,
              give_back=True, maxrefill=1, stamp_at=None):
        nt = len(tiles)
        extra = extra or {}
        nreal = sum(1 for x in side if not isinstance(x, Call))
        ntiles_side = nt * side_steps
        rate = (nreal / float(ntiles_side)) if ntiles_side else 0.0
        quota = 0.0
        si = [0]

        def take(n):
            out = []
            cnt_ = 0
            while si[0] < len(side) and (cnt_ < n or isinstance(side[si[0]], Call)):
                x = side[si[0]]
                si[0] += 1
                out.append(x)
                if not isinstance(x, Call):
                    cnt_ += 1
            return out

        def emit_list(lst):
            for x in lst:
                if isinstance(x, Call):
                    x.fn()
                else:
                    e(x)

        if first_reads:
            for rf in range(4):
                e(g.xfrag_read(st["kstep"], 0, rf))
        for p in range(NP):
            if p in barrier_at:
                if stamp_at and p in stamp_at:
                    e(stamp(stamp_at[p]))
                e(barrier())
            ex_p = list(extra.get(p, []))
            for idx, c in enumerate(tiles):
                n = st["ntile"]
                ws_ = g.wslot(n)
                if p == 0:
                    order = [(rf, bias_reg(c)) for rf in (3, 2, 1, 0)]
                else:
                    order = [(rf, acc(c, rf)) for rf in range(4)]
                nside = 0
                if p < side_steps:
                    quota += rate
                    nside = int(quota + 1e-9)
                    quota -= nside
                fixed0 = []
                for _ in range(min(st["pend"], maxrefill) if st["pend"] else 0):
                    fixed0 += g.wload_instrs()
                k2 = 0
                while st["pend"] and k2 < maxrefill - 1 and g.can_load():
                    fixed0 += g.wload_instrs(); k2 += 1
                st["pend"] = 0
                fixed1 = []
                if 1 <= idx <= 4:
                    if p + 1 < NP:
                        fixed1.append(g.xfrag_read(st["kstep"] + 1, p + 1, idx - 1))
                    elif prefetch_next:
                        fixed1.append(g.xfrag_read(st["kstep"] + 1, 0, idx - 1))
                if ex_p:
                    fixed1.append(ex_p.pop(0))
                if g.ready_stores and g.nload >= TILES_PER_WAVE and ((st["ntile"] + VARIANT[0]) % SPACE == 0):
                    x_ = g.ready_stores.pop(0)
                    if not os.environ.get("X_NOSTORE"):
                        fixed1.append(x_)
                sd = take(nside) if nside else []
                nsd = sum(1 for x in sd if not isinstance(x, Call))
                cap = [max(0, 2 - len(fixed0)), max(0, 2 - len(fixed1)), 2, 1]
                cnt = [0, 0, 0, 0]
                k = 0
                for gi in (2, 1, 0, 3):
                    m_ = min(cap[gi], nsd - k)
                    cnt[gi] += m_
                    k += m_
                gi = 0
                while k < nsd:
                    cnt[gi % 4] += 1; k += 1; gi += 1
                kk = 0
                for j, (rf, csrc) in enumerate(order):
                    m = mfma16(acc(c, rf), ws_, g.xfrag(st["kstep"], rf), csrc)
                    exr = []
                    if j == 0 and (n % 2 == 0) and (n + 1) in g.slot:
                        exr += regs(g.wslot(n + 1), 4)
                        g.retire(("w", n + 1))
                    elif j == 0:
                        g.retire(("w", n))
                    if j == 0 and idx == 0:
                        for r2 in range(4):
                            exr += regs(g.xfrag(st["kstep"], r2), 4)
                    m.extra = frozenset(exr)
                    e(m)
                    if j == 0:
                        e(*fixed0)
                    if j == 1:
                        e(*fixed1)
                    c_ = cnt[j]
                    while kk < len(sd) and (c_ > 0 or isinstance(sd[kk], Call)):
                        if isinstance(sd[kk], Call):
                            sd[kk].fn()
                        else:
                            e(sd[kk]); c_ -= 1
                        kk += 1
                g.release(n, give_back)
                st["pend"] = 1
                st["ntile"] += 1
            emit_list(ex_p)
            if p == side_steps - 1:
                emit_list(side[si[0]:]); si[0] = len(side)
            st["kstep"] += 1

    for c in range(8):
        e(bias_read(0, c))
    extra = {}
    bar = []
    for q in range(1, 7):
        extra[4 * q - 2] = x0_writes(q)
        bar.append(4 * q - 1)
    extra[24] = [bias_read(0, c) for c in range(8, 13)]
    if X_STAMP:
        e(stamp(1))
    phase(PASSES[0], [], 0, barrier_at=tuple(bar), extra=extra,
          give_back=lambda b: not (b in g.borrowed and g.nload >= 208), maxrefill=2,
          stamp_at=({3: 2, 7: 3, 11: 4, 15: 5, 19: 6, 23: 7} if X_STAMP == 3 else ({3: 6, 7: 7, 11: 8} if X_STAMP == 6 else None)))
    g.free = deque(b for b in g.free if b not in g.borrowed)
    assert all(g.slot[n] not in g.borrowed for n in range(208, g.nload))
    g.pre_load_hook = None
    for l in range(L):
        if l > 0:
            if X_STAMP and X_STAMP not in (3, 6):
                e(stamp(1 + 3 * l))
            phase(PASSES[0], E1_side(l - 1), 13, barrier_at=(14,))
        if X_STAMP and X_STAMP not in (3, 6):
            e(stamp(2 + 3 * l))
        if X_STAMP == 3 and l == 0:
            e(stamp(8))
        if l == L - 1 and NVAR > 1:
            e(I("Lvar_mark:", "label", nst=0))
        phase(PASSES[1], E0_side(l), NP, prefetch_next=False, first_reads=False,
              maxrefill=3 if l == L - 1 else 1)
        if X_STAMP and X_STAMP not in (3, 6):
            e(stamp(3 + 3 * l))
        if l < L - 1:
            e(barrier())
            for P in range(4):
                for rf in range(4):
                    e(ds_write(ldsaddr(P), acc(2 * P, rf), 4, rf * 4096))
            e(barrier())
        else:
            e(*g.ready_stores)
            g.ready_stores = []
            e(*E1_side(l))
    if X_STAMP:
        e(drain_vm())
        e(stamp(10))
        e(stamp(15, real=True))
        e(raw("s_cmp_ge_u32 s2, %d" % (256 if X_STAMP in (2, 5) else (1 if X_STAMP == 4 else 16))))
        e(raw("s_cbranch_scc1 Lmain_end"))
        e(raw("s_load_dwordx2 s[36:37], s[0:1], 32"))
        e(raw("s_waitcnt lgkmcnt(0)"))
        e(raw("s_mov_b32 s40, s36"))
        e(raw("s_and_b32 s41, s37, 0xffff"))
        e(raw("s_mov_b32 s42, %d" % (256 if X_STAMP == 4 else 65536)))
        e(raw("s_mov_b32 s43, 0x00020000"))
        e(raw("s_lshl_b32 s44, s2, 2"))
        e(raw("s_add_u32 s44, s44, %s" % sWAVE))
        e(raw("s_lshl_b32 s44, s44, 6"))
        e(raw("v_mov_b32 v1, 0"))
        for k in range(16):
            e(raw("v_mov_b32 v2, s%d" % (64 + 2 * k)))
            e(raw("buffer_store_dword v2, v1, s[40:43], s44 offen offset:%d" % (4 * k)))
    s = insert_waits(g.s)
    s = pad_hazards(s, verbose=True)
    body = render(s)
    return gen_main_prologue_text() + part1 + gen_main_srd_text(), body


def gen_main_all():
    if NVAR == 1:
        head, body = gen_main()
        return head + body + "\nLmain_end:\n  s_endpgm\n"
    parts = []
    for v in range(NVAR):
        VARIANT[0] = v
        parts.append(gen_main())
    head = parts[0][0]
    pre = parts[0][1].split("  Lvar_mark:\n")[0]
    txt = head + pre
    for v in range(1, NVAR):
        assert parts[v][1].split("  Lvar_mark:\n")[0] == pre
        txt += "  s_cmp_eq_u32 %s, %d\n  s_cbranch_scc1 Lvar%d\n" % (sWAVE, v, v)
    for v in range(NVAR):
        if v:
            txt += "Lvar%d:\n" % v
        txt += parts[v][1].split("  Lvar_mark:\n")[1].replace("Lmain_end", "Lvend%d" % v) + "\nLvend%d:\n  s_endpgm\n" % v
    txt += "Lmain_end:\n  s_endpgm\n"
    return txt


def main():
    out = sys.argv[1] if len(sys.argv) > 1 else "standalone__cross_network_dcn__recsys.s"
    hdr = f"""; DCN-v2 cross network, 3 fused layers, bf16 MFMA (hand-designed schedule, emitted by my own generator script).
; @launch kernel={KPREP} grid=({NP},12,1) block=(832,1,1) lds=0
; @launch kernel={KMAIN} grid=({NWG},1,1) block=(256,1,1) lds={LDS_BYTES}
.amdgcn_target "amdgcn-amd-amdhsa--gfx950"
.text
"""
    txt = hdr + gen_prep() + gen_main_all()
    txt += '.section .rodata,"a"\n.p2align 6\n'
    txt += DESC.format(name=KPREP, nvgpr=32, nsgpr=56, accoff=32, extra="  .amdhsa_system_sgpr_workgroup_id_y 1\n")
    txt += ".p2align 6\n"
    txt += DESC.format(name=KMAIN, nvgpr=512, nsgpr=100, accoff=256, extra="")
    open(out, "w").write(txt)
    print("wrote", out, len(txt), "bytes")


if __name__ == "__main__":
    main()
```
